```python
import torch

def _softmax(x, axis=-1):
    return torch.softmax(x, dim=axis)
def _gelu(x):
    return torch.nn.functional.gelu(x, approximate="tanh")
def _silu(x):
    return torch.nn.functional.silu(x)
def _sigmoid(x):
    return torch.sigmoid(x)
def _layernorm(x, axis=-1, eps=1e-5):
    m = x.mean(dim=axis, keepdim=True)
    v = x.var(dim=axis, keepdim=True, unbiased=False)
    return (x - m) / torch.sqrt(v + eps)
def _scatter_add(tgt, idx, src, axis=0):
    return tgt.clone().index_add_(axis, idx, src)
def _segment_sum(src, seg, n):
    out = torch.zeros((n,) + src.shape[1:], dtype=src.dtype)
    return out.index_add_(0, seg, src)
def _pad(x, pw):
    flat = tuple(v for pair in reversed(pw) for v in pair)
    return torch.nn.functional.pad(x, flat)

kernel_name = 'standalone__sliding_block_cached__decode'

def setup_inputs():

    _w = (lambda a: (lambda t: t.to(torch.bfloat16) if t.is_floating_point() else t)(torch.as_tensor(a)))
    B, Sq, D = 2, 1, 640
    Hq, Hkv, Sk, Dh = 32, 32, 16384, 128
    assert Hq % Hkv == 0, (Hq, Hkv)
    return {
        "x": _w((lambda *s: torch.randn(*s, dtype=torch.bfloat16) * 0.8)(B, Sq, D)),
        "k_cache": _w((lambda *s: torch.randn(*s, dtype=torch.bfloat16) * 0.8)(B, Hkv, Sk, Dh)),
        "v_cache": _w((lambda *s: torch.randn(*s, dtype=torch.bfloat16) * 0.05)(B, Hkv, Sk, Dh)),
        "wq": _w((lambda *s: torch.randn(*s, dtype=torch.bfloat16) * 0.8)(D, Hq * Dh) * (D ** -0.5)),
        "wo": _w((lambda *s: torch.randn(*s, dtype=torch.bfloat16) * 0.05)(Hq * Dh, D) * ((Hq * Dh) ** -0.5)),
    }

def reference(x, k_cache, v_cache, wq, wo):
    B, Sq, D = x.shape
    Hq, Dh = 32, 128
    Hkv, Sk = k_cache.shape[1], k_cache.shape[2]
    W = min(4096, max(256, Sk // 4))
    rep = Hq // Hkv
    q = (lambda x, *d: x.permute(*d))((x @ wq).reshape(B, Sq, Hq, Dh), 0, 2, 1, 3)
    k = (lambda x, n, axis: torch.repeat_interleave(x, n, dim=axis))(k_cache[:, :, Sk - W:, :], rep, axis=1)
    v = (lambda x, n, axis: torch.repeat_interleave(x, n, dim=axis))(v_cache[:, :, Sk - W:, :], rep, axis=1)
    scores = torch.einsum("bhqd,bhkd->bhqk", q, k) * (Dh ** -0.5)
    p = _softmax(scores, axis=-1)
    o = torch.einsum("bhqk,bhkd->bhqd", p, v)
    return (lambda x, *d: x.permute(*d))(o, 0, 2, 1, 3).reshape(B, Sq, Hq * Dh) @ wo
```

```python
import re

TRANS = ("v_exp_f32", "v_log_f32", "v_rcp_f32", "v_rsq_f32", "v_sqrt_f32", "v_sin_f32", "v_cos_f32")

_REG = re.compile(r"(?<![\w.])([vas])\[(\d+):(\d+)\]|(?<![\w.])([vas])(\d+)(?![\w])|\b(vcc|exec|m0)\b")


def regs_of(text):
    out = set()
    for m in _REG.finditer(text):
        if m.group(1):
            for i in range(int(m.group(2)), int(m.group(3)) + 1):
                out.add(m.group(1) + str(i))
        elif m.group(4):
            out.add(m.group(4) + m.group(5))
        else:
            out.add(m.group(6))
    return out


def split_ops(rest):
    ops, depth, cur = [], 0, ""
    for ch in rest:
        if ch == "[":
            depth += 1
        if ch == "]":
            depth -= 1
        if ch == "," and depth == 0:
            ops.append(cur.strip())
            cur = ""
        else:
            cur += ch
    if cur.strip():
        ops.append(cur.strip())
    return ops


class Ins:
    def __init__(self, text):
        self.text = text
        body = text.split(";")[0].strip()
        parts = body.split(None, 1)
        self.op = parts[0]
        rest = parts[1] if len(parts) > 1 else ""
        ops = split_ops(rest)
        if ops:
            last = ops[-1].split()
            self.mods = " ".join(last[1:])
            ops[-1] = last[0]
        else:
            self.mods = ""
        self.ops = ops
        op = self.op
        self.states = 1
        self.cls = "other"
        self.w, self.r = set(), set()
        self.srcc = set()
        self.ab = set()
        self.dpp_src = set()
        self.store_data = set()
        self.passes = 0
        R = [regs_of(o) for o in ops]
        allr = set().union(*R) if R else set()
        if op == "s_nop":
            self.states = int(ops[0], 0) + 1
        elif op.startswith("v_mfma") or op.startswith("v_smfmac"):
            self.cls = "mfma"
            self.w = R[0]
            self.ab = R[1] | R[2]
            self.srcc = R[3] if op.startswith("v_mfma") else R[0]
            if op.startswith("v_smfmac"):
                self.ab |= R[3]
            self.r = self.ab | self.srcc
            self.passes = 8 if "32x32" in op or "16x16x64_bf16" in op else 4
        elif op.startswith("v_"):
            self.cls = "valu"
            if op.startswith("v_permlane") and "swap" in op:
                self.w = R[0] | R[1]
                self.r = R[0] | R[1]
            elif op.startswith("v_nop"):
                pass
            else:
                self.w = set(R[0])
                self.r = set().union(*R[1:]) if len(R) > 1 else set()
                if op.startswith(("v_add_co", "v_addc_co", "v_sub_co", "v_subb_co")):
                    self.w |= R[1]
                    self.r = set().union(*R[2:])
                if op.startswith(("v_fmac", "v_dot2c", "v_writelane")):
                    self.r |= R[0]
                if op.startswith("v_cmpx"):
                    self.w.add("exec")
            if "_dpp" in op:
                self.dpp_src = R[1]
                self.r |= R[0]
        elif op.startswith(("global_", "buffer_")):
            self.cls = "vmem"
            if op in ("buffer_wbl2", "buffer_inv"):
                pass
            elif "load" in op and "lds" not in op and "lds" not in self.mods.split():
                self.w = R[0]
                self.r = set().union(*R[1:])
            elif "atomic" in op and "sc0" in self.mods.split():
                self.w = R[0]
                self.r = set().union(*R[1:]) if op.startswith("global_") else allr
            else:
                self.r = allr
                if "x3" in op or "x4" in op:
                    if "store" in op:
                        self.store_data = R[1] if op.startswith("global_") else R[0]
            if "lds" in op or "lds" in self.mods.split():
                self.r.add("m0")
        elif op.startswith("ds_"):
            self.cls = "ds"
            if op.startswith(("ds_read", "ds_bpermute", "ds_permute", "ds_swizzle")) or "_rtn" in op:
                self.w = R[0]
                self.r = set().union(*R[1:])
            else:
                self.r = allr
        elif op.startswith("s_"):
            self.cls = "salu"
            if op.startswith(("s_cmp", "s_cbranch", "s_branch", "s_waitcnt", "s_barrier", "s_endpgm",
                              "s_setprio", "s_sleep", "s_bitcmp")):
                self.r = allr
            else:
                self.w = set(R[0]) if R else set()
                self.r = set().union(*R[1:]) if len(R) > 1 else set()
                if "saveexec" in op:
                    self.w.add("exec")


def is_sreg(x):
    return x[0] == "s" or x == "vcc"


def required(prod, cons):
    need = 0
    pv = prod.cls == "valu"
    if pv:
        wv = {x for x in prod.w if x[0] in "va" and x != "vcc"}
        ws = {x for x in prod.w if is_sreg(x)}
        if cons.cls == "mfma" and wv & cons.r:
            need = max(need, 2)
        if cons.cls == "valu":
            if wv & cons.dpp_src:
                need = max(need, 2)
            if cons.op.startswith("v_permlane") and wv & cons.r:
                need = max(need, 2)
            if cons.op.startswith(("v_readlane", "v_readfirstlane")) and wv & cons.r:
                need = max(need, 1)
            if prod.op.startswith(TRANS) and wv & cons.r:
                need = max(need, 1)
            if ws & cons.r:
                need = max(need, 4 if cons.op.startswith(("v_readlane", "v_writelane")) else 2)
            if cons.op.startswith("v_cndmask") and "vcc" in ws and len(cons.ops) == 4 and cons.ops[3] == "vcc":
                need = max(need, 2)
            if "exec" in prod.w:
                need = max(need, 5)
        if cons.cls == "vmem" and ws & cons.r:
            need = max(need, 5)
        if cons.cls == "salu" and ws & cons.r:
            need = max(need, 1)
        if cons.cls == "salu" and cons.op.startswith("s_cbranch_vcc") and "vcc" in ws:
            need = max(need, 1)
        if cons.cls == "mfma" and "exec" in prod.w:
            need = max(need, 4)
        if prod.op.startswith("v_dot") and cons.cls in ("valu", "mfma") and (wv & (cons.r | cons.w)):
            same_c = cons.op == prod.op and not (wv & (regs_of(cons.ops[1]) | regs_of(cons.ops[2])))
            if not same_c:
                need = max(need, 3)
    if prod.cls == "mfma":
        p = prod.passes
        full = {4: 8, 8: 12}[p]
        if cons.cls == "mfma":
            if prod.w & cons.ab:
                need = max(need, full)
            if prod.w & cons.srcc and not (prod.w == cons.srcc and prod.passes == cons.passes):
                need = max(need, {4: 6, 8: 10}[p])
            if prod.w & cons.w and not (prod.w == cons.srcc):
                need = max(need, full)
        if cons.cls == "valu":
            if prod.w & (cons.r | cons.w):
                need = max(need, full)
            if prod.srcc & cons.w:
                need = max(need, {4: 3, 8: 7}[p])
        if cons.cls in ("vmem", "ds") and prod.w & (cons.r | cons.w):
            need = max(need, full)
    if prod.cls == "vmem" and prod.store_data:
        if cons.cls == "valu" and prod.store_data & cons.w:
            need = max(need, 2)
        elif prod.store_data & cons.w:
            need = max(need, 1)
    if prod.cls == "salu" and "m0" in prod.w and cons.cls == "vmem" and "m0" in cons.r:
        need = max(need, 1)
    return need


class Asm:
    def __init__(self):
        self.lines = []
        self.hists = [[]]
        self.pending = {}
        self.vm = []
        self.nops = 0

    def raw(self, text):
        self.lines.append(text)

    def comment(self, text):
        self.lines.append("    ; " + text)

    def label(self, name):
        self.lines.append(name + ":")
        self.hists += self.pending.pop(name, [])
        if not self.hists:
            self.hists = [[]]

    def _push(self, ins):
        for h in self.hists:
            h.append(ins)
            del h[:-20]
        seen, keep = set(), []
        for h in self.hists:
            key = tuple(id(i) for i in h)
            if key not in seen:
                seen.add(key)
                keep.append(h)
        self.hists = keep
        self.lines.append("    " + ins.text)

    def __call__(self, text, tag=None, counted=True):
        for line in text.strip().split("\n"):
            line = line.strip()
            if not line:
                continue
            if line.startswith(";"):
                self.lines.append("    " + line)
                continue
            ins = Ins(line)
            need = 0
            for h in self.hists:
                dist = 0
                for prev in reversed(h):
                    n = required(prev, ins)
                    if n > dist:
                        need = max(need, n - dist)
                    dist += prev.states
                    if dist >= 20:
                        break
            while need > 0:
                k = min(need, 16)
                self._push(Ins("s_nop %d" % (k - 1)))
                self.nops += k
                need -= k
            self._push(ins)
            if ins.op.startswith(("s_cbranch", "s_branch")):
                self.pending.setdefault(ins.ops[0], []).extend([list(h) for h in self.hists])
            if ins.op in ("s_branch", "s_endpgm"):
                self.hists = []
            if ins.cls == "vmem" and counted:
                self.vm.append(tag)

    def wait_vm(self, tag, extra=""):
        if tag not in self.vm:
            if extra:
                self("s_waitcnt " + extra)
            return
        idx = len(self.vm) - 1 - self.vm[::-1].index(tag)
        n = len(self.vm) - 1 - idx
        assert n <= 63, n
        self(("s_waitcnt vmcnt(%d) %s" % (n, extra)).strip())
        self.vm = self.vm[idx + 1:]

    def wait_vm_all(self):
        self("s_waitcnt vmcnt(0)")
        self.vm = []

    def text(self):
        return "\n".join(self.lines) + "\n"
```

```python
import sys
import math
import struct
from asmlib import Asm

NAME = "standalone__sliding_block_cached__decode"
HEADER = open("cdna_kernels/%s.s.ref" % NAME).read().split("; Override launch")[0]

DEFAULTS = dict(
    stamps=0,
    kvpol="nt",
    wpol="",
    ilv=0,
    head="qqk",
    headbar=1,
    wo_last=0,
    wo_first=20,
)


def f32(x):
    return "0x%08x" % struct.unpack("<I", struct.pack("<f", x))[0]


def gen(**kw):
    P = dict(DEFAULTS)
    P.update(kw)
    a = Asm()
    kvpol = (" " + P["kvpol"]) if P["kvpol"] else ""
    wpol = (" " + P["wpol"]) if P["wpol"] else ""

    SX, SK, SV, SQ, SO, SOUT, SDBG, SWS = 4, 8, 12, 16, 20, 24, 28, 32
    srd = lambda n: "s[%d:%d]" % (n, n + 3)
    sW, sH, sB, sS = "s36", "s37", "s38", "s39"
    sKo, sVo, sQo, sOo, sXo = "s40", "s41", "s42", "s43", "s44"
    sT0, sT1, sT2, sC, sCnt, sInb, sMl, sCons = "s45", "s46", "s47", "s48", "s49", "s50", "s51", "s52"
    sOo2 = "s53"
    ST0 = 56
    nst = [0]
    stamp_names = []

    def stamp(name):
        if not P["stamps"]:
            return
        k = nst[0]
        assert ST0 + 2 * k + 1 <= 101
        a("%s s[%d:%d]" % ("s_memrealtime" if P["stamps"] == 1 else "s_memtime", ST0 + 2 * k, ST0 + 2 * k + 1))
        stamp_names.append(name)
        nst[0] += 1

    vL, vKo, vVo, vQo, vOo = "v1", "v2", "v3", "v4", "v5"
    vM = ["v6", "v7", "v8", "v9"]
    vX0, vX1 = "v10", "v11"
    ACC = 12
    BT = [16, 20]
    BQ = 24
    SS = 40
    vS = ["v%d" % (SS + i) for i in range(8)]
    SLOT0 = 48
    free_slots = list(range(52))
    slot_of = {}
    vr = lambda n, k=4: "v[%d:%d]" % (n, n + k - 1)
    sreg = lambda tag: SLOT0 + 4 * slot_of[tag]

    LQP, LQB, LML, LOP, LYP = 0, 4096, 6144, 8192, 16384
    LDS = LYP + 8 * 2560
    WS_ML = 2 * 80 * 4096
    WS_BYTES = 1 << 30

    if P["ilv"] == 0:
        kv_off = lambda n: n * 1024
        strideW = 32768
    elif P["ilv"] == 1:
        kv_off = lambda n: n * 8192
        strideW = 1024
    else:
        kv_off = lambda n: (n >> 2) * 32768 + (n & 3) * 1024
        strideW = 4096
    cur = {"k": 0, "v": 0, "q": 0}

    def bump(sreg_, key, off):
        if not (0 <= off - cur[key] <= 4095):
            d = off - cur[key]
            if -32768 <= d <= 32767:
                a("s_addk_i32 %s, 0x%x" % (sreg_, d))
            else:
                a("s_add_u32 %s, %s, 0x%x" % (sreg_, sreg_, d))
            cur[key] = off
        return off - cur[key]

    def issue(tag):
        kind, n = tag
        slot_of[tag] = free_slots.pop(0)
        d = vr(sreg(tag))
        if kind == "k":
            o = bump(sKo, "k", kv_off(n))
            a("buffer_load_dwordx4 %s, %s, %s, %s offen offset:%d%s" % (d, vKo, srd(SK), sKo, o, kvpol), tag)
        elif kind == "v":
            o = bump(sVo, "v", kv_off(n))
            a("buffer_load_dwordx4 %s, %s, %s, %s offen offset:%d%s" % (d, vVo, srd(SV), sVo, o, kvpol), tag)
        elif kind == "q":
            o = bump(sQo, "q", n * 8192)
            a("buffer_load_dwordx4 %s, %s, %s, %s offen offset:%d%s" % (d, vQo, srd(SQ), sQo, o, wpol), tag)
        elif kind == "o":
            so, o = (sOo, n * 256) if n < 16 else (sOo2, n * 256 - 4096)
            a("buffer_load_dwordx4 %s, %s, %s, %s offen offset:%d%s" % (d, vOo, srd(SO), so, o, wpol), tag)

    def release(tag):
        free_slots.append(slot_of[tag])

    a("s_cmp_ge_u32 s2, 0x100")
    a("s_cbranch_scc1 L_exit")
    for i, s in enumerate((SX, SK, SV, SQ, SO, SOUT, SDBG, SWS)):
        a("s_load_dwordx2 s[%d:%d], s[0:1], %d" % (s, s + 1, 8 * i))
    stamp("entry")
    a("v_lshrrev_b32 v12, 6, v0")
    a("v_and_b32 %s, 63, v0" % vL)
    a("v_readfirstlane_b32 %s, v12" % sW)
    sizes = {SX: 2560, SK: 1 << 28, SV: 1 << 28, SQ: 640 * 8192, SO: 4096 * 1280, SOUT: 2560, SDBG: 256, SWS: WS_BYTES}
    for s, n in sizes.items():
        a("s_mov_b32 s%d, 0x%x" % (s + 2, n))
        a("s_mov_b32 s%d, 0x20000" % (s + 3))
    a(f"""
    s_and_b32 {sT0}, s2, 7
    s_lshl_b32 {sT0}, {sT0}, 2
    s_bfe_u32 {sT1}, s2, 0x20003
    s_add_u32 {sH}, {sT0}, {sT1}
    s_lshr_b32 {sB}, s2, 7
    s_bfe_u32 {sS}, s2, 0x20005
    s_lshl_b32 {sT0}, {sB}, 5
    s_add_u32 {sT0}, {sT0}, {sH}
    s_lshl_b32 {sT0}, {sT0}, 22
    s_lshl_b32 {sT1}, {sS}, 18
    s_add_u32 {sT0}, {sT0}, {sT1}
    s_mul_i32 {sT1}, {sW}, {strideW}
    s_add_u32 {sT0}, {sT0}, {sT1}
    s_add_u32 {sKo}, {sT0}, 0x300000
    s_mov_b32 {sVo}, {sKo}
    s_mul_i32 {sT0}, {sW}, {80 * 8192}
    s_lshl_b32 {sT1}, {sH}, 8
    s_add_u32 {sQo}, {sT0}, {sT1}
    s_mul_i32 {sT0}, {sB}, 1280
    s_mul_i32 {sT1}, {sW}, 160
    s_add_u32 {sXo}, {sT0}, {sT1}
    s_lshl_b32 {sT0}, {sH}, 3
    s_add_u32 {sT0}, {sT0}, {sW}
    s_mul_i32 {sOo}, {sT0}, {16 * 1280}
    s_add_u32 {sOo2}, {sOo}, 0x1000
    v_lshrrev_b32 v12, 4, {vL}
    v_and_b32 v13, 15, {vL}
    v_lshlrev_b32 {vVo}, 4, {vL}
    v_lshlrev_b32 v14, 4, v13
    v_mul_u32_u24 v15, {20 * 8192}, v12
    v_add_u32 {vQo}, v15, v14
    v_mul_u32_u24 v15, {4 * 1280}, v12
    v_add_u32 {vOo}, v15, v14
    v_lshrrev_b32 v15, 2, v13
    v_lshlrev_b32 v15, 8, v15
    v_and_b32 v16, 3, v13
    v_lshlrev_b32 v16, 4, v16
    v_lshl_add_u32 v16, v12, 6, v16
    v_add_u32 {vKo}, v15, v16
    v_mul_u32_u24 v15, 40, v12
    v_lshl_add_u32 v17, v13, 1, v15
    s_waitcnt lgkmcnt(0)
    """)
    stamp("kernarg")
    a(f"buffer_load_ushort {vX0}, v17, {srd(SX)}, {sXo} offen", "x0")
    a(f"buffer_load_ushort {vX1}, v17, {srd(SX)}, {sXo} offen offset:32", "x1")

    qs = [("q", t) for t in range(20)]
    ks = [("k", n) for n in range(32)]
    pat = P["head"]
    i = 0
    cleared = False
    while qs:
        ch = pat[i % len(pat)]
        i += 1
        if ch == "q":
            issue(qs.pop(0))
        elif ks:
            issue(ks.pop(0))
        if len(qs) == 4 and not cleared:
            cleared = True
            a(f"""
            s_mul_i32 {sInb}, {sB}, {80 * 4096}
            s_lshl_b32 {sT0}, {sS}, 10
            s_add_u32 {sInb}, {sInb}, {sT0}
            s_lshl_b32 {sT0}, {sH}, 5
            s_add_u32 {sInb}, {sInb}, {sT0}
            s_lshl_b32 {sMl}, {sB}, 10
            s_add_u32 {sMl}, {sMl}, {sT0}
            s_lshl_b32 {sT0}, {sS}, 3
            s_add_u32 {sMl}, {sMl}, {sT0}
            s_add_u32 {sMl}, {sMl}, 0x{WS_ML:x}
            v_mov_b32 v20, -1
            v_mov_b32 v21, -1
            v_mov_b32 v22, -1
            v_mov_b32 v23, -1
            v_lshrrev_b32 v18, 1, v0
            v_lshlrev_b32 v18, 12, v18
            v_and_b32 v19, 1, v0
            v_lshl_add_u32 v18, v19, 4, v18
            s_cmp_ge_u32 {sW}, 3
            s_cbranch_scc1 L_noclear
            v_cmp_gt_u32 vcc, 0xa0, v0
            s_and_saveexec_b64 s[54:55], vcc
            """)
            a(f"buffer_store_dwordx4 v[20:23], v18, {srd(SWS)}, {sInb} offen sc1", counted=False)
            a(f"""
            s_mov_b64 exec, 1
            s_cmp_lg_u32 {sW}, 0
            s_cbranch_scc1 L_noclear2
            """)
            a(f"buffer_store_dwordx2 v[20:21], off, {srd(SWS)}, {sMl} sc1", counted=False)
            a.label("L_noclear2")
            a("s_mov_b64 exec, -1")
            a.label("L_noclear")
    stamp("wq_issued")
    if P["headbar"]:
        a("s_barrier")
    for t in ks:
        issue(t)
    stamp("k_issued")

    a(f"""
    v_and_b32 v12, 1, {vL}
    v_lshlrev_b32 v12, 4, v12
    v_mov_b32 v13, 0xffff
    v_lshlrev_b32 v12, v12, v13
    v_bfe_u32 v13, {vL}, 1, 2
    """)
    for r in range(4):
        a(f"v_cmp_eq_u32 vcc, {r}, v13")
        a(f"v_cndmask_b32 {vM[r]}, 0, v12, vcc")
    for r in range(16):
        a("v_mov_b32 v%d, 0" % (BQ + r))
    a(f"s_mov_b32 {sC}, {f32(128 ** -0.5 * math.log2(math.e))}")

    second = [("o", t) for t in range(20)]
    vs = [("v", n) for n in range(32)]
    nlast = P["wo_last"]
    nfirst = min(P["wo_first"], 20 - nlast)
    mid = second[nfirst:20 - nlast]
    seq2 = second[:nfirst]
    for n, t in enumerate(vs):
        seq2.append(t)
        if mid and n % 2 == 1:
            seq2.append(mid.pop(0))
    seq2 += mid + second[20 - nlast:]
    assert len(seq2) == 52

    a.wait_vm("x1")
    a(f"v_lshl_or_b32 {vX0}, {vX0}, 16, {vX0}")
    a(f"v_lshl_or_b32 {vX1}, {vX1}, 16, {vX1}")
    for t in range(20):
        bt = BT[t & 1]
        src, lane = (vX0, t) if t < 16 else (vX1, t - 16)
        for r in range(4):
            a(f"v_and_b32_dpp v{bt + r}, {src}, {vM[r]} row_newbcast:{lane} row_mask:0xf bank_mask:0xf")
        a.wait_vm(("q", t))
        if t == 0:
            stamp("wq0")
        c = "0" if t == 0 else vr(ACC)
        a(f"v_mfma_f32_16x16x32_bf16 {vr(ACC)}, {vr(bt)}, {vr(sreg(('q', t)))}, {c}")
        release(("q", t))
        issue(seq2.pop(0))
    stamp("wq19")
    a(f"""
    v_and_b32 v16, 15, {vL}
    v_lshlrev_b32 v16, 5, v16
    v_and_b32 v17, 16, {vL}
    v_add_u32 {vX0}, v16, v17
    s_lshl_b32 {sT0}, {sW}, 9
    v_add_u32 v16, {sT0}, {vX0}
    s_mov_b32 exec_hi, 0
    ds_write_b128 v16, {vr(ACC)} offset:{LQP}
    s_mov_b32 exec_hi, -1
    v_lshlrev_b32 v17, 3, {vL}
    s_waitcnt lgkmcnt(0)
    s_barrier
    """)
    stamp("qbar")
    a(f"""
    s_cmp_lg_u32 {sW}, 0
    s_cbranch_scc1 L_noflag
    s_mov_b64 exec, 1
    v_mov_b32 v18, 1
    """)
    a(f"buffer_store_byte v18, off, {srd(SDBG)}, s2 sc1", counted=False)
    a("s_mov_b64 exec, -1")
    a.label("L_noflag")
    T = SS
    for half in range(2):
        for w in range(4):
            a(f"ds_read_b64 v[{T + 2 * w}:{T + 2 * w + 1}], v17 offset:{LQP + 512 * (4 * half + w)}")
        a("s_waitcnt lgkmcnt(0)")
        a(f"v_pk_add_f32 v[{T}:{T + 1}], v[{T}:{T + 1}], v[{T + 2}:{T + 3}]")
        a(f"v_pk_add_f32 v[{T + 4}:{T + 5}], v[{T + 4}:{T + 5}], v[{T + 6}:{T + 7}]")
        d = 12 + 2 * half
        a(f"v_pk_add_f32 v[{d}:{d + 1}], v[{T}:{T + 1}], v[{T + 4}:{T + 5}]")
    a(f"""
    v_pk_add_f32 v[12:13], v[12:13], v[14:15]
    s_lshl_b32 {sT0}, {sW}, 8
    v_lshl_add_u32 v16, {vL}, 2, {sT0}
    v_cvt_pk_bf16_f32 v12, v12, v13
    ds_write_b32 v16, v12 offset:{LQB}
    v_and_b32 v16, 0xff, {vKo}
    v_add_u32 v16, {sT0}, v16
    s_waitcnt lgkmcnt(0)
    """)
    for n in range(4):
        m = 0x000F000F << (4 * n)
        a(f"""
        s_mov_b32 exec_lo, 0x{m:x}
        s_mov_b32 exec_hi, 0x{m:x}
        ds_read_b128 {vr(BQ + 4 * n)}, v16 offset:{LQB}
        """)
    a("s_mov_b64 exec, -1")
    a("s_waitcnt lgkmcnt(0)")
    stamp("q_ready")

    for G in range(8):
        acc = ACC if G % 2 == 0 else BT[0]
        for n in range(4):
            tag = ("k", 4 * G + n)
            a.wait_vm(tag)
            c = "0" if n == 0 else vr(acc)
            a(f"v_mfma_f32_16x16x32_bf16 {vr(acc)}, {vr(sreg(tag))}, {vr(BQ + 4 * n)}, {c}")
            release(tag)
            issue(seq2.pop(0))
        if G == 3:
            a(f"""
            s_cmp_lg_u32 {sW}, 7
            s_cbranch_scc1 L_noflagload
            v_lshlrev_b32 v20, 2, {vL}
            """)
            a(f"buffer_load_dword {vX1}, v20, {srd(SDBG)}, 0 offen sc1", counted=False)
            a.label("L_noflagload")
        a(f"v_mov_b32_dpp {vS[G]}, v{acc} quad_perm:[0,0,0,0] row_mask:0xf bank_mask:0xf")
        for r in range(1, 4):
            a(f"v_add_f32_dpp {vS[G]}, v{acc + r}, {vS[G]} quad_perm:[{r},{r},{r},{r}] row_mask:0xf bank_mask:0xf")
    assert not seq2
    stamp("k_done")

    def allreduce_rows(op, reg, tmp):
        a(f"{op}_dpp {reg}, {reg}, {reg} row_ror:4 row_mask:0xf bank_mask:0xf")
        a(f"{op}_dpp {reg}, {reg}, {reg} row_ror:8 row_mask:0xf bank_mask:0xf")
        for sw in ("v_permlane16_swap_b32", "v_permlane32_swap_b32"):
            a(f"v_mov_b32 {tmp}, {reg}")
            a(f"{sw} {reg}, {tmp}")
            a(f"{op} {reg}, {reg}, {tmp}")

    a(f"""
    v_max3_f32 v12, {vS[0]}, {vS[1]}, {vS[2]}
    v_max3_f32 v13, {vS[3]}, {vS[4]}, {vS[5]}
    v_max3_f32 v12, v12, {vS[6]}, {vS[7]}
    v_max_f32 v12, v12, v13
    """)
    allreduce_rows("v_max_f32", "v12", "v13")
    a(f"v_mul_f32 v12, {sC}, v12")
    for G in range(8):
        a(f"v_fma_f32 {vS[G]}, {vS[G]}, {sC}, -v12")
    for G in range(8):
        a(f"v_exp_f32 {vS[G]}, {vS[G]}")
    a(f"v_add_f32 v13, {vS[0]}, {vS[1]}")
    for G in range(2, 8):
        a(f"v_add_f32 v13, v13, {vS[G]}")
    allreduce_rows("v_add_f32", "v13", "v14")
    a(f"""
    s_lshl_b32 {sT0}, {sW}, 3
    v_mov_b32 v14, {sT0}
    v_and_b32 v15, 7, {vL}
    v_lshlrev_b32 v15, 3, v15
    s_mov_b64 exec, 1
    ds_write_b64 v14, v[12:13] offset:{LML}
    s_mov_b64 exec, -1
    s_waitcnt lgkmcnt(0)
    s_barrier
    ds_read_b64 v[16:17], v15 offset:{LML}
    s_waitcnt lgkmcnt(0)
    v_max_f32_dpp v18, v16, v16 quad_perm:[1,0,3,2] row_mask:0xf bank_mask:0xf
    v_max_f32_dpp v18, v18, v18 quad_perm:[2,3,0,1] row_mask:0xf bank_mask:0xf
    v_max_f32_dpp v18, v18, v18 row_half_mirror row_mask:0xf bank_mask:0xf
    v_sub_f32 v16, v16, v18
    v_sub_f32 v12, v12, v18
    v_exp_f32 v16, v16
    v_exp_f32 v12, v12
    v_mul_f32 v19, v16, v17
    v_add_f32_dpp v19, v19, v19 quad_perm:[1,0,3,2] row_mask:0xf bank_mask:0xf
    v_add_f32_dpp v19, v19, v19 quad_perm:[2,3,0,1] row_mask:0xf bank_mask:0xf
    v_add_f32_dpp v19, v19, v19 row_half_mirror row_mask:0xf bank_mask:0xf
    v_min_u32 v18, -2, v18
    v_min_u32 v19, -2, v19
    s_cmp_lg_u32 {sW}, 0
    s_cbranch_scc1 L_noml
    s_mov_b64 exec, 1
    """)
    a(f"buffer_store_dwordx2 v[18:19], off, {srd(SWS)}, {sMl} sc1", counted=False)
    a("s_mov_b64 exec, -1")
    a.label("L_noml")
    for G in range(8):
        a(f"v_mul_f32 {vS[G]}, {vS[G]}, v12")
    for G in range(8):
        a(f"v_cvt_pk_bf16_f32 {vS[G]}, {vS[G]}, {vS[G]}")
    stamp("p_ready")

    a(f"""
    s_mul_i32 {sT0}, {sW}, 544
    v_add_u32 v24, {sT0}, {vX0}
    v_and_b32 v25, 7, {vL}
    v_mul_u32_u24 v25, 544, v25
    v_and_b32 v26, 48, {vL}
    s_lshl_b32 {sT0}, {sW}, 6
    v_add3_u32 v25, v25, v26, {sT0}
    s_mul_i32 {sT0}, {sW}, 2560
    v_add_u32 v26, {sT0}, {vX0}
    v_lshlrev_b32 v27, 4, v0
    """)
    for n in range(32):
        bt = BT[n & 1]
        for r in range(4):
            a(f"v_and_b32_dpp v{bt + r}, {vS[n >> 2]}, {vM[r]} row_newbcast:{4 * (n & 3)} row_mask:0xf bank_mask:0xf")
        a.wait_vm(("v", n))
        if n in (0, 16, 31):
            stamp("v%d" % n)
        c = "0" if n == 0 else vr(ACC)
        a(f"v_mfma_f32_16x16x32_bf16 {vr(ACC)}, {vr(bt)}, {vr(sreg(('v', n)))}, {c}")
    a(f"""
    s_mov_b32 exec_hi, 0
    ds_write_b128 v24, {vr(ACC)} offset:{LOP}
    s_mov_b32 exec_hi, -1
    s_waitcnt lgkmcnt(0)
    s_barrier
    ds_read_b128 {vr(ACC)}, v25 offset:{LOP}
    s_waitcnt lgkmcnt(0)
    """)
    stamp("obar")
    for mod in ("quad_perm:[1,0,3,2]", "quad_perm:[2,3,0,1]", "row_half_mirror"):
        for r in range(4):
            a(f"v_add_f32_dpp v{ACC + r}, v{ACC + r}, v{ACC + r} {mod} row_mask:0xf bank_mask:0xf")
    for r in range(4):
        a(f"v_cvt_pk_bf16_f32 v{ACC + r}, v{ACC + r}, v{ACC + r}")
    Y = 28
    for rg in range(4):
        bt = BT[rg & 1]
        for r in range(4):
            a(f"v_and_b32 v{bt + r}, v{ACC + rg}, {vM[r]}")
        for cb in range(5):
            tag = ("o", 5 * rg + cb)
            a.wait_vm(tag)
            c = "0" if rg == 0 else vr(Y + 4 * cb)
            a(f"v_mfma_f32_16x16x32_bf16 {vr(Y + 4 * cb)}, {vr(bt)}, {vr(sreg(tag))}, {c}")
    a("s_mov_b32 exec_hi, 0")
    for cb in range(5):
        a(f"ds_write_b128 v26, {vr(Y + 4 * cb)} offset:{LYP + 512 * cb}")
    a(f"""
    s_mov_b32 exec_hi, -1
    s_waitcnt lgkmcnt(0)
    s_barrier
    """)
    stamp("ybar")
    a(f"""
    s_cmp_ge_u32 {sW}, 3
    s_cbranch_scc1 L_nopub
    v_cmp_gt_u32 vcc, 0xa0, v0
    s_and_saveexec_b64 s[54:55], vcc
    """)
    for w in range(8):
        a(f"ds_read_b128 {vr(48 + 4 * w)}, v27 offset:{LYP + 2560 * w}")
    a(f"""
    v_lshrrev_b32 v18, 1, v0
    v_lshlrev_b32 v18, 12, v18
    v_and_b32 v19, 1, v0
    v_lshl_add_u32 v18, v19, 4, v18
    """)
    for i, (x, y) in enumerate(((0, 1), (2, 3), (4, 5), (6, 7), (0, 2), (4, 6), (0, 4))):
        if i < 4:
            a(f"s_waitcnt lgkmcnt({(6 - 2 * i) if not P['stamps'] else 0})")
        for hh in (0, 2):
            a(f"v_pk_add_f32 {vr(48 + 4 * x + hh, 2)}, {vr(48 + 4 * x + hh, 2)}, {vr(48 + 4 * y + hh, 2)}")
    for r in range(4):
        a(f"v_min_u32 v{48 + r}, -2, v{48 + r}")
    a(f"buffer_store_dwordx4 v[48:51], v18, {srd(SWS)}, {sInb} offen sc1", counted=False)
    a("s_mov_b64 exec, -1")
    a("s_branch L_end")
    a.label("L_nopub")

    a(f"""
    s_cmp_lg_u32 {sW}, 7
    s_cbranch_scc1 L_end
    s_cmp_lt_u32 s2, 96
    s_cbranch_scc1 L_end
    s_sub_u32 {sCons}, s2, 96
    s_lshl_b32 {sInb}, {sCons}, 12
    s_cmp_ge_u32 {sCons}, 80
    s_cselect_b32 {sMl}, 0x400, 0
    s_add_u32 {sMl}, {sMl}, 0x{WS_ML:x}
    s_mov_b32 {sCnt}, 0
    v_lshlrev_b32 v20, 2, {vL}
    v_lshrrev_b32 v21, 1, {vL}
    v_lshlrev_b32 v21, 5, v21
    s_mov_b32 {sT0}, 0x01010101
    s_waitcnt vmcnt(0)
    """)
    a.label("L_flags")
    a(f"""
    v_cmp_ne_u32 vcc, {sT0}, {vX1}
    s_cbranch_vccz L_poll
    """)
    a(f"buffer_load_dword {vX1}, v20, {srd(SDBG)}, 0 offen sc1", counted=False)
    a(f"""
    s_add_u32 {sCnt}, {sCnt}, 1
    s_cmp_ge_u32 {sCnt}, 0x40000
    s_cbranch_scc1 L_end
    s_waitcnt vmcnt(0)
    s_branch L_flags
    """)
    a.label("L_poll")
    for k in range(4):
        a(f"buffer_load_dwordx4 {vr(48 + 4 * k)}, {vVo}, {srd(SWS)}, {sInb} offen offset:{1024 * k} sc1", counted=False)
    for k in range(2):
        a(f"buffer_load_dwordx4 {vr(64 + 4 * k)}, v21, {srd(SWS)}, {sMl} offen offset:{16 * k} sc1", counted=False)
    a(f"""
    s_add_u32 {sCnt}, {sCnt}, 1
    s_cmp_ge_u32 {sCnt}, 0x40000
    s_cbranch_scc1 L_end
    s_waitcnt vmcnt(0)
    v_max3_u32 v12, v48, v49, v50
    v_max3_u32 v13, v51, v52, v53
    """)
    for i in range(54, 72, 4):
        a(f"v_max3_u32 v12, v12, v{i}, v{i + 1}")
        if i + 2 < 72:
            a(f"v_max3_u32 v13, v13, v{i + 2}, v{i + 3}")
    a(f"""
    v_max_u32 v12, v12, v13
    v_cmp_eq_u32 vcc, -1, v12
    s_cbranch_vccnz L_poll
    """)
    stamp("polled")
    a(f"""
    v_max3_f32 v12, v64, v66, v68
    v_max_f32 v12, v12, v70
    v_sub_f32 v64, v64, v12
    v_sub_f32 v66, v66, v12
    v_sub_f32 v68, v68, v12
    v_sub_f32 v70, v70, v12
    v_exp_f32 v64, v64
    v_exp_f32 v66, v66
    v_exp_f32 v68, v68
    v_exp_f32 v70, v70
    v_mul_f32 v13, v64, v65
    v_fmac_f32 v13, v66, v67
    v_fmac_f32 v13, v68, v69
    v_fmac_f32 v13, v70, v71
    v_rcp_f32 v13, v13
    """)
    for r in range(4):
        a(f"v_mul_f32 v{16 + r}, v64, v{48 + r}")
    for s in range(1, 4):
        for r in range(4):
            a(f"v_fmac_f32 v{16 + r}, v{64 + 2 * s}, v{48 + 4 * s + r}")
    for r in range(4):
        a(f"v_mul_f32 v{16 + r}, v13, v{16 + r}")
    a(f"""
    v_permlane32_swap_b32 v16, v18
    v_permlane32_swap_b32 v17, v19
    v_add_f32 v16, v16, v18
    v_add_f32 v17, v17, v19
    v_permlane16_swap_b32 v16, v17
    v_add_f32 v16, v16, v17
    v_add_f32_dpp v16, v16, v16 row_ror:8 row_mask:0xf bank_mask:0xf
    v_add_f32_dpp v16, v16, v16 row_ror:4 row_mask:0xf bank_mask:0xf
    v_add_f32_dpp v16, v16, v16 row_ror:2 row_mask:0xf bank_mask:0xf
    v_lshrrev_b32 v20, 4, {vL}
    v_and_b32 v21, 1, {vL}
    v_lshlrev_b32 v21, 2, v21
    v_add_lshl_u32 v20, v20, v21, 1
    v_cvt_pk_bf16_f32 v16, v16, v16
    s_lshl_b32 {sT0}, {sCons}, 4
    s_mov_b32 exec_lo, 0x00030003
    s_mov_b32 exec_hi, 0x00030003
    """)
    a(f"buffer_store_short v16, v20, {srd(SOUT)}, {sT0} offen", counted=False)
    a("s_mov_b64 exec, -1")
    a.label("L_end")
    if P["stamps"]:
        a("s_mov_b64 exec, -1")
        stamp("end")
        a("s_waitcnt vmcnt(0)")
        stamp("drained")
        a("s_getreg_b32 %s, hwreg(HW_REG_XCC_ID)" % sT1)
        a("s_getreg_b32 %s, hwreg(HW_REG_HW_ID)" % sT2)
        a("s_waitcnt lgkmcnt(0)")
        a("v_mov_b32 v12, 0")
        for k in range(nst[0]):
            a("v_writelane_b32 v12, s%d, %d" % (ST0 + 2 * k, k))
        a("v_writelane_b32 v12, %s, 29" % sCnt)
        a("v_writelane_b32 v12, %s, 30" % sT1)
        a("v_writelane_b32 v12, %s, 31" % sT2)
        a(f"""
        s_lshl_b32 {sT0}, s2, 3
        s_add_u32 {sT0}, {sT0}, {sW}
        s_lshl_b32 {sT0}, {sT0}, 7
        s_add_u32 {sT0}, {sT0}, 0x100000
        v_lshlrev_b32 v13, 2, {vL}
        s_mov_b32 exec_hi, 0
        """)
        a(f"buffer_store_dword v12, v13, {srd(SWS)}, {sT0} offen", counted=False)
    a.label("L_exit")
    a("s_endpgm")

    out = HEADER
    out += "; @launch grid=(256,1,1) block=(512,1,1) lds=%d\n" % LDS
    if stamp_names:
        out += "; stamps: " + " ".join(stamp_names) + "\n"
    out += f""".amdgcn_target "amdgcn-amd-amdhsa--gfx950"
.text
.globl {NAME}_kernel
.p2align 8
.type {NAME}_kernel,@function
{NAME}_kernel:
"""
    out += a.text()
    out += f""".section .rodata,"a"
.p2align 6
.amdhsa_kernel {NAME}_kernel
  .amdhsa_next_free_vgpr 256
  .amdhsa_next_free_sgpr 102
  .amdhsa_accum_offset 256
  .amdhsa_group_segment_fixed_size 0
  .amdhsa_kernarg_size 64
  .amdhsa_user_sgpr_count 2
  .amdhsa_user_sgpr_kernarg_segment_ptr 1
  .amdhsa_system_sgpr_workgroup_id_x 1
  .amdhsa_float_denorm_mode_32 3
.end_amdhsa_kernel
"""
    return out


if __name__ == "__main__":
    path = sys.argv[1]
    kw = {}
    for arg in sys.argv[2:]:
        k, v = arg.split("=", 1)
        kw[k] = int(v) if v.lstrip("-").isdigit() else v
    open(path, "w").write(gen(**kw))
```

```python
import re

TRANS = ("v_exp_f32", "v_log_f32", "v_rcp_f32", "v_rsq_f32", "v_sqrt_f32", "v_sin_f32", "v_cos_f32")

_REG = re.compile(r"(?<![\w.])([vas])\[(\d+):(\d+)\]|(?<![\w.])([vas])(\d+)(?![\w])|\b(vcc|exec|m0)(?:_lo|_hi)?\b")


def regs_of(text):
    out = set()
    for m in _REG.finditer(text):
        if m.group(1):
            for i in range(int(m.group(2)), int(m.group(3)) + 1):
                out.add(m.group(1) + str(i))
        elif m.group(4):
            out.add(m.group(4) + m.group(5))
        else:
            out.add(m.group(6))
    return out


def split_ops(rest):
    ops, depth, cur = [], 0, ""
    for ch in rest:
        if ch == "[":
            depth += 1
        if ch == "]":
            depth -= 1
        if ch == "," and depth == 0:
            ops.append(cur.strip())
            cur = ""
        else:
            cur += ch
    if cur.strip():
        ops.append(cur.strip())
    return ops


class Ins:
    def __init__(self, text):
        self.text = text
        body = text.split(";")[0].strip()
        parts = body.split(None, 1)
        self.op = parts[0]
        rest = parts[1] if len(parts) > 1 else ""
        ops = split_ops(rest)
        if ops:
            last = ops[-1].split()
            self.mods = " ".join(last[1:])
            ops[-1] = last[0]
        else:
            self.mods = ""
        self.ops = ops
        op = self.op
        self.states = 1
        self.cls = "other"
        self.w, self.r = set(), set()
        self.srcc = set()
        self.ab = set()
        self.dpp_src = set()
        self.store_data = set()
        self.passes = 0
        R = [regs_of(o) for o in ops]
        allr = set().union(*R) if R else set()
        if op == "s_nop":
            self.states = int(ops[0], 0) + 1
        elif op.startswith("v_mfma") or op.startswith("v_smfmac"):
            self.cls = "mfma"
            self.w = R[0]
            self.ab = R[1] | R[2]
            self.srcc = R[3] if op.startswith("v_mfma") else R[0]
            if op.startswith("v_smfmac"):
                self.ab |= R[3]
            self.r = self.ab | self.srcc
            self.passes = 8 if "32x32" in op or "16x16x64_bf16" in op else 4
        elif op.startswith("v_"):
            self.cls = "valu"
            if op.startswith("v_permlane") and "swap" in op:
                self.w = R[0] | R[1]
                self.r = R[0] | R[1]
            elif op.startswith("v_nop"):
                pass
            else:
                self.w = set(R[0])
                self.r = set().union(*R[1:]) if len(R) > 1 else set()
                if op.startswith(("v_add_co", "v_addc_co", "v_sub_co", "v_subb_co")):
                    self.w |= R[1]
                    self.r = set().union(*R[2:])
                if op.startswith(("v_fmac", "v_dot2c", "v_writelane")):
                    self.r |= R[0]
                if op.startswith("v_cmpx"):
                    self.w.add("exec")
            if "_dpp" in op:
                self.dpp_src = R[1]
                self.r |= R[0]
        elif op.startswith(("global_", "buffer_")):
            self.cls = "vmem"
            if op in ("buffer_wbl2", "buffer_inv"):
                pass
            elif "load" in op and "lds" not in op and "lds" not in self.mods.split():
                self.w = R[0]
                self.r = set().union(*R[1:])
            elif "atomic" in op and "sc0" in self.mods.split():
                self.w = R[0]
                self.r = set().union(*R[1:]) if op.startswith("global_") else allr
            else:
                self.r = allr
                if "x3" in op or "x4" in op:
                    if "store" in op:
                        self.store_data = R[1] if op.startswith("global_") else R[0]
            if "lds" in op or "lds" in self.mods.split():
                self.r.add("m0")
        elif op.startswith("ds_"):
            self.cls = "ds"
            if op.startswith(("ds_read", "ds_bpermute", "ds_permute", "ds_swizzle")) or "_rtn" in op:
                self.w = R[0]
                self.r = set().union(*R[1:])
            else:
                self.r = allr
        elif op.startswith("s_"):
            self.cls = "salu"
            if op.startswith(("s_cmp", "s_cbranch", "s_branch", "s_waitcnt", "s_barrier", "s_endpgm",
                              "s_setprio", "s_sleep", "s_bitcmp")):
                self.r = allr
            else:
                self.w = set(R[0]) if R else set()
                self.r = set().union(*R[1:]) if len(R) > 1 else set()
                if "saveexec" in op:
                    self.w.add("exec")


VOP3_ONLY = ("v_lshl_add", "v_add3", "v_add_lshl", "v_bfe_", "v_bfi_", "v_mad_", "v_fma_", "v_max3", "v_min3", "v_or3",
             "v_and_or", "v_lshl_or", "v_perm_b32", "v_bitop3", "v_cvt_pk_", "v_pk_", "v_readlane", "v_writelane",
             "v_mul_lo", "v_mul_hi", "v_mfma", "v_smfmac", "v_dot2_", "v_alignbit", "v_med3", "v_xad", "v_mbcnt")
SOPP = ("s_waitcnt", "s_branch", "s_cbranch", "s_nop", "s_barrier", "s_sleep", "s_setprio", "s_endpgm",
        "s_movk", "s_addk", "s_getreg", "s_mulk", "s_cmpk")
INLINE_F = {0x3f000000, 0xbf000000, 0x3f800000, 0xbf800000, 0x40000000, 0xc0000000, 0x40800000, 0xc0800000, 0x3e22f983}


def is_literal(op):
    if op == "CPF_MAX":
        return True
    try:
        v = int(op, 0)
    except ValueError:
        return False
    if -16 <= v <= 64 or v in INLINE_F or v >= 0xfffffff0:
        return False
    return True


def size_of(ins):
    op = ins.op
    if op.startswith(SOPP):
        return 4
    if ins.cls in ("vmem", "ds", "mfma") or op.startswith(("s_load", "s_memrealtime", "s_memtime", "s_buffer_load")):
        return 8
    if op.startswith(VOP3_ONLY) or "_dpp" in op:
        return 8
    lit = 4 if any(is_literal(o) for o in ins.ops) else 0
    if ins.cls == "valu" and not lit:
        if op.startswith("v_cmp") and ins.ops[0] != "vcc":
            return 8
        if op.startswith("v_cndmask") and ins.ops[-1] != "vcc":
            return 8
        src1 = ins.ops[2] if len(ins.ops) > 2 else "v0"
        if not src1.startswith("v") or any(o.startswith(("-v", "-s", "abs")) for o in ins.ops):
            return 8
    return 4 + lit


def is_sreg(x):
    return x[0] == "s" or x == "vcc"


def required(prod, cons):
    need = 0
    pv = prod.cls == "valu"
    if pv:
        wv = {x for x in prod.w if x[0] in "va" and x != "vcc"}
        ws = {x for x in prod.w if is_sreg(x)}
        if cons.cls == "mfma" and wv & cons.r:
            need = max(need, 2)
        if cons.cls == "valu":
            if wv & cons.dpp_src:
                need = max(need, 2)
            if cons.op.startswith("v_permlane") and wv & cons.r:
                need = max(need, 2)
            if cons.op.startswith(("v_readlane", "v_readfirstlane")) and wv & cons.r:
                need = max(need, 1)
            if prod.op.startswith(TRANS) and wv & cons.r:
                need = max(need, 1)
            if ws & cons.r:
                need = max(need, 4 if cons.op.startswith(("v_readlane", "v_writelane")) else 2)
            if cons.op.startswith("v_cndmask") and "vcc" in ws and len(cons.ops) == 4 and cons.ops[3] == "vcc":
                need = max(need, 2)
            if "exec" in prod.w:
                need = max(need, 5)
        if cons.cls == "vmem" and ws & cons.r:
            need = max(need, 5)
        if cons.cls == "salu" and ws & cons.r:
            need = max(need, 1)
        if cons.cls == "salu" and cons.op.startswith("s_cbranch_vcc") and "vcc" in ws:
            need = max(need, 1)
        if cons.cls == "mfma" and "exec" in prod.w:
            need = max(need, 4)
        if prod.op.startswith("v_dot") and cons.cls in ("valu", "mfma") and (wv & (cons.r | cons.w)):
            same_c = cons.op == prod.op and not (wv & (regs_of(cons.ops[1]) | regs_of(cons.ops[2])))
            if not same_c:
                need = max(need, 3)
    if prod.cls == "mfma":
        p = prod.passes
        full = {4: 8, 8: 12}[p]
        if cons.cls == "mfma":
            if prod.w & cons.ab:
                need = max(need, full)
            if prod.w & cons.srcc and not (prod.w == cons.srcc and prod.passes == cons.passes):
                need = max(need, {4: 6, 8: 10}[p])
            if prod.w & cons.w and not (prod.w == cons.srcc):
                need = max(need, full)
        if cons.cls == "valu":
            if prod.w & (cons.r | cons.w):
                need = max(need, full)
            if prod.srcc & cons.w:
                need = max(need, {4: 3, 8: 7}[p])
        if cons.cls in ("vmem", "ds") and prod.w & (cons.r | cons.w):
            need = max(need, full)
    if prod.cls == "vmem" and prod.store_data:
        if cons.cls == "valu" and prod.store_data & cons.w:
            need = max(need, 2)
        elif prod.store_data & cons.w:
            need = max(need, 1)
    if prod.cls == "salu" and "m0" in prod.w and cons.cls == "vmem" and "m0" in cons.r:
        need = max(need, 1)
    return need


class Asm:
    def __init__(self):
        self.lines = []
        self.hists = [[]]
        self.pending = {}
        self.vm = []
        self.nops = 0
        self.nbytes = 0
        self.hook = None

    def raw(self, text):
        self.lines.append(text)

    def comment(self, text):
        self.lines.append("    ; " + text)

    def label(self, name):
        self.lines.append(name + ":")
        self.hists += self.pending.pop(name, [])
        if not self.hists:
            self.hists = [[]]

    def _push(self, ins):
        for h in self.hists:
            h.append(ins)
            del h[:-20]
        seen, keep = set(), []
        for h in self.hists:
            key = tuple(id(i) for i in h)
            if key not in seen:
                seen.add(key)
                keep.append(h)
        self.hists = keep
        self.nbytes += size_of(ins)
        self.lines.append("    " + ins.text)

    def __call__(self, text, tag=None, counted=True):
        for line in text.strip().split("\n"):
            line = line.strip()
            if not line:
                continue
            if line.startswith(";"):
                self.lines.append("    " + line)
                continue
            if self.hook:
                hook, self.hook = self.hook, None
                hook()
                self.hook = hook
            ins = Ins(line)
            need = 0
            for h in self.hists:
                dist = 0
                for prev in reversed(h):
                    n = required(prev, ins)
                    if n > dist:
                        need = max(need, n - dist)
                    dist += prev.states
                    if dist >= 20:
                        break
            while need > 0:
                k = min(need, 16)
                self._push(Ins("s_nop %d" % (k - 1)))
                self.nops += k
                need -= k
            self._push(ins)
            if ins.op.startswith(("s_cbranch", "s_branch")):
                self.pending.setdefault(ins.ops[0], []).extend([list(h) for h in self.hists])
            if ins.op in ("s_branch", "s_endpgm"):
                self.hists = []
            if ins.cls == "vmem" and counted:
                self.vm.append(tag)

    def wait_vm(self, tag, extra=""):
        if tag not in self.vm:
            if extra:
                self("s_waitcnt " + extra)
            return
        idx = len(self.vm) - 1 - self.vm[::-1].index(tag)
        n = len(self.vm) - 1 - idx
        assert n <= 63, n
        self(("s_waitcnt vmcnt(%d) %s" % (n, extra)).strip())
        self.vm = self.vm[idx + 1:]

    def wait_vm_all(self):
        self("s_waitcnt vmcnt(0)")
        self.vm = []

    def text(self):
        return "\n".join(self.lines) + "\n"
```

```python
import sys
import math
import struct
from asmlib import Asm

NAME = "standalone__sliding_block_cached__decode"
HEADER = open("cdna_kernels/%s.s.ref" % NAME).read().split("; Override launch")[0]

DEFAULTS = dict(
    stamps=0,
    diag="",
    keep="",
    kvpol="nt", wqpol="nt", wopol="", opol="",
    D=5,
    ds=5, nds=0,
    dend=8, nend=3,
    pat="n0,n1,w0^n1,w1^n0,s0,n2,s1,n3,n4,n5",
    N1=46,
    wo_last=5, wo_at=80,
    touch=1, catch=2, extra=2, prio=3,
    qtries=16, mlsleep=60, limit=0x40000,
    align=1,
    p3sleep=0, p3gap=0,
    gate=3, gtries=40, sl_late=4, sl_early=8, gmin=32,
    ybar=0,
    mask2=1, mask3=1,
    och=8,
    ysep=0,
    ogrp=1,
    ctrl=1,
    dhi=7, theta=32, every=1, rde=2, cend=10, cbar=8, hiend=1,
    warm=0,
    tail="z",
)


def f32(x):
    return "0x%08x" % struct.unpack("<I", struct.pack("<f", x))[0]


def scatter(pat, kind, val):
    out = 0
    for i, terms in enumerate(pat):
        for p in terms.split("^"):
            if p[0] == kind:
                out ^= ((val >> int(p[1:])) & 1) << (10 + i)
    return out


def gen(**kw):
    P = dict(DEFAULTS)
    P.update(kw)
    a = Asm()
    pol = lambda k: (" " + P[k]) if P[k] else ""
    D, N1 = P["D"], P["N1"]
    Z = P["tail"] == "z"
    ACK = P["gate"] in (3, 4)
    G4 = P["gate"] == 4
    GATE = 0 if ACK else P["gate"]
    sGt = "s57" if P["och"] != 1 else None
    B5 = "" if GATE or ACK else "s_barrier\n"
    sCons = "s3"
    assert Z
    FULL = "row_mask:0xf bank_mask:0xf"
    pat = P["pat"].split(",")

    SX, SK, SV, SQ, SO, SOUT, SWS = 4, 8, 12, 16, 20, 24, 28
    SIZE = {SX: 2560, SK: 1 << 28, SV: 1 << 28, SQ: 640 * 8192, SO: 4096 * 1280, SOUT: 2560, SWS: 1 << 30}
    srd = lambda n: "s[%d:%d]" % (n, n + 3)
    sW, sH, sB, sS, sCc = "s32", "s33", "s34", "s35", "s36"
    sKo, sMl, sT0, sT1, sT2, sC, sCnt, sE, sTag = "s37", "s38", "s39", "s40", "s41", "s42", "s43", "s44", "s45"
    sA, sA2, sA3, sCt, sFF = "s46", "s47", "s48", "s49", "s50"
    sY, sOff, sOin, sT16, sLoc, sTq = "s51", "s52", "s53", "s54", "s55", "s56"
    ST0 = 58
    names = []
    keep = P["keep"].split(",") if P["keep"] else None

    diag = P["diag"].split(":") if P["diag"] else None

    def stamp(name):
        if diag:
            if name == diag[2]:
                a("s_memrealtime s[60:61]")
            if name == diag[3]:
                a("s_memrealtime s[62:63]")
            return
        if not P["stamps"] or (keep and name not in keep + ["entry", "drained"]):
            return
        if name not in names:
            names.append(name)
        k = names.index(name)
        assert ST0 + 2 * k + 1 <= 101, "too many stamps"
        a("s_memrealtime s[%d:%d]" % (ST0 + 2 * k, ST0 + 2 * k + 1))

    def zero_stamps():
        if P["stamps"]:
            for k in range(ST0 + 2 * 3, 102, 2):
                a("s_mov_b32 s%d, 0" % k)

    def srd_tail(*which):
        for s in which:
            a("s_mov_b32 s%d, 0x%x" % (s + 2, SIZE[s]))
            a("s_mov_b32 s%d, 0x20000" % (s + 3))

    vr = lambda n, k=4: "v[%d:%d]" % (n, n + k - 1)
    WS_E, WS_Q, WS_ML, WS_B, WS_O = 0xd0000, 0x40000, 0xc0000, 0xc8000, 0
    WS_Y = 0x800 if P['ysep'] else 0x80000
    sOin2 = 's57'
    LQ, LML, LFL, LPR, LOP, LOB, LWO = 0, 256, 320, 352, 512, 2560, 4096
    LDS = LWO + 20480

    def spin_guard(label_fail):
        a(f"""
        s_add_u32 {sCnt}, {sCnt}, 1
        s_cmp_ge_u32 {sCnt}, 0x{P['limit']:x}
        s_cbranch_scc1 {label_fail}
        """)

    islands = [0]
    zone = [0]

    def island(after_branch=False):
        if not P["warm"]:
            return
        hook, a.hook = a.hook, None
        k = islands[0]
        if not after_branch:
            a(f"s_branch L_isl{k}_skip")
        a.label(f"L_isl{k}")
        a(f"s_branch L_isl{k + 1}")
        if not after_branch:
            a.label(f"L_isl{k}_skip")
        islands[0] += 1
        zone[0] = a.nbytes // P["warm"]
        a.hook = hook

    def auto_island():
        if a.nbytes // P["warm"] > zone[0]:
            island()

    if P["warm"]:
        a.hook = auto_island

    KOFF = 0x4400 if P["och"] == 1 else 0x400

    def oslot(dst):
        if P["och"] == 8:
            return f"s_lshl_b32 {dst}, {sH}, 12"
        return f"s_and_b32 {dst}, {sH}, 7\ns_lshl_b32 {dst}, {dst}, 15"

    def oblock(dst, g):
        if P["och"] == 8:
            return f"v_lshlrev_b32 {dst}, 8, {g}"
        return (f"v_mul_u32_u24 {dst}, 0x1100, {g}\ns_and_b32 {sT0}, {sH}, 24\ns_lshl_b32 {sT0}, {sT0}, 5\n"
                f"v_xor_b32 {dst}, {sT0}, {dst}")

    def tags():
        a(f"""
        s_add_u32 {sTag}, {sE}, 1
        s_and_b32 {sTag}, {sTag}, 0xff
        """)

    vL = "v1"
    stamp("entry")
    if P["stamps"]:
        names.extend(n for n in ("kernarg", "burst") if n not in names)
        a("s_mov_b32 s%d, 0\ns_mov_b32 s%d, 0" % (ST0 + 2, ST0 + 4))
    for s, off in ((SK, 8), (SQ, 24), (SX, 0), (SV, 16), (SWS, 56), (SO, 32), (SOUT, 40)):
        a("s_load_dwordx2 s[%d:%d], s[0:1], %d" % (s, s + 1, off))
    a(f"""
    v_lshrrev_b32 v12, 6, v0
    s_cmp_ge_u32 s2, 0x100
    s_cbranch_scc1 L_exit
    v_readfirstlane_b32 {sW}, v12
    v_and_b32 {vL}, 63, v0
    s_and_b32 {sH}, s2, 31
    s_lshr_b32 {sCc}, s2, 5
    v_lshrrev_b32 v12, 4, {vL}
    v_and_b32 v13, 15, {vL}
    s_lshr_b32 {sB}, {sCc}, 2
    s_and_b32 {sS}, {sCc}, 3
    s_lshl_b32 {sT0}, {sB}, 5
    s_add_u32 {sT0}, {sT0}, {sH}
    s_lshl_b32 {sT0}, {sT0}, 22
    s_add_u32 {sKo}, {sT0}, 0x300000
    s_cmp_lt_u32 {sW}, 4
    s_cbranch_scc1 L_stream
    s_cmp_lg_u32 {sW}, 4
    s_cbranch_scc1 L_service
    """)

    XR, SEL, WQ = 20, 32, 48
    a(f"s_setprio {P['prio']}")
    srd_tail(SQ, SX)
    a(f"""
    s_mul_i32 {sA}, {sCc}, {80 * 8192}
    s_lshl_b32 {sT0}, {sH}, 8
    s_add_u32 {sA}, {sA}, {sT0}
    s_mul_i32 {sA2}, {sCc}, 160
    v_mul_u32_u24 v2, {20 * 8192}, v12
    v_lshl_add_u32 v2, v13, 4, v2
    v_lshrrev_b32 v14, 3, v13
    v_mul_u32_u24 v14, 1280, v14
    v_mad_u32_u24 v3, v12, 40, v14
    s_waitcnt lgkmcnt(0)
    """)
    stamp("kernarg")
    a(f"buffer_load_dwordx4 {vr(XR)}, v3, {srd(SX)}, {sA2} offen", "x0")
    a(f"buffer_load_dwordx4 {vr(XR + 4)}, v3, {srd(SX)}, {sA2} offen offset:16", "x1")
    a(f"buffer_load_dwordx2 {vr(XR + 8, 2)}, v3, {srd(SX)}, {sA2} offen offset:32", "x2")
    for t in range(20):
        if t:
            a(f"s_addk_i32 {sA}, 0x2000")
        a(f"buffer_load_dwordx4 {vr(WQ + 4 * t)}, v2, {srd(SQ)}, {sA} offen{pol('wqpol')}", ("q", t))
    stamp("burst")
    a("s_branch L_lead")
    lead_vm = a.vm
    a.vm = []

    a.label("L_stream")
    vKo, vVo = "v2", "v3"
    vM = ["v4", "v5", "v6", "v7"]
    vMx, vB0 = "v8", "v9"
    vT0, vT1 = "v10", "v11"
    ACC, BT, BQ, SS, SLOT0 = 12, [16, 20], 24, 40, 56
    vS = ["v%d" % (SS + i) for i in range(16)]
    CT = P["ctrl"]
    vFa, vFl, vPr = "v252", "v253", "v254"
    free_slots = list(range(49 if CT else 50))
    slot_of = {}
    sreg = lambda tag: SLOT0 + 4 * slot_of[tag]
    assert N1 <= 48

    def scat_s(dst, kind, src):
        pos_ = [(i, int(p[1:])) for i, t in enumerate(pat) for p in t.split("^") if p[0] == kind]
        if len(pos_) == 2 and pos_[1] == (pos_[0][0] + 1, 1) and pos_[0][1] == 0:
            a(f"s_lshl_b32 {sT0}, {src}, {10 + pos_[0][0]}")
            a(f"s_xor_b32 {dst}, {dst}, {sT0}")
            return
        for i, b in pos_:
            a(f"s_and_b32 {sT0}, {src}, {1 << b}")
            a(f"s_lshl_b32 {sT0}, {sT0}, {10 + i - b}")
            a(f"s_xor_b32 {dst}, {dst}, {sT0}")

    srd_tail(SK)
    scat_s(sKo, "s", sS)
    scat_s(sKo, "w", sW)
    a(f"""
    v_lshrrev_b32 v15, 2, v13
    v_lshlrev_b32 v15, 8, v15
    v_and_b32 v16, 3, v13
    v_lshlrev_b32 v16, 4, v16
    v_lshl_add_u32 v16, v12, 6, v16
    v_add_u32 {vKo}, v15, v16
    s_waitcnt lgkmcnt(0)
    """)
    stamp("kernarg")

    seq = [("k", n) for n in range(64)] + [("v", n) for n in range(64)]
    for i in range(5 - P["wo_last"]):
        seq.insert(P["wo_at"] + 3 * i, ("o", i))
    seq += [("o", n) for n in range(5 - P["wo_last"], 5)]
    WOA = BQ
    pos = [0]
    curhi = [0]
    immmask = sum(1 << (10 + i) for i in range(2) if all(p[0] == "n" for p in pat[i].split("^")))

    def depth(i):
        if i < P["nds"]:
            return P["ds"]
        k = i - (len(seq) - P["nend"])
        return D if k < 0 else min(max(P["dend"], D), D + k + 1)

    def depth_hi(i):
        if not CT:
            return depth(i)
        k = i - (len(seq) - P["wo_last"])
        return max(depth(i), P["dhi"] + (k + 1 if k >= 0 and P["hiend"] else 0))

    armed = [False]

    def issue_next(throttle=True):
        i = pos[0]
        tag = seq[i]
        kind, n = tag
        if kind == "o":
            a(f"s_add_u32 m0, {sA}, {n * 4096}")
            text = f"buffer_load_dwordx4 v{WOA + n}, {srd(SO)}, {sA2} offen{pol('wopol')} lds"
        else:
            slot_of[tag] = free_slots.pop(0)
            vo, sd = (vKo, SK) if kind == "k" else (vVo, SV)
            cn = scatter(pat, "n", n)
            imm, hi = cn & immmask, cn & ~immmask
            so = sKo
            if hi:
                so = sOff
                if hi != curhi[0]:
                    a(f"s_xor_b32 {sOff}, {sKo}, 0x{hi:x}")
                    curhi[0] = hi
            text = f"buffer_load_dwordx4 {vr(sreg(tag))}, {vo}, {srd(sd)}, {so} offen offset:{imm}{pol('kvpol')}"
        if throttle:
            lo, hi_ = depth(i), depth_hi(i)
            if lo < hi_ and i >= lo and len(a.vm) >= lo:
                a(f"s_cbranch_vccnz L_b{i}")
                a(f"s_waitcnt vmcnt({lo - 1})")
                a.label(f"L_b{i}")
            if i >= hi_:
                a.wait_vm(seq[i - hi_])
        a(text, tag)
        pos[0] += 1
        if CT and armed[0] and i < 128 - P["cend"] + 8:
            if i % P["rde"] == 1 and armed[0] == 2:
                a(f"s_waitcnt lgkmcnt(0)\nv_cmp_eq_u32 vcc, 1, {vFl}")
            if i % P["rde"] == 0:
                a(f"ds_read_b32 {vFl}, {vFa} offset:{LFL}")
                armed[0] = 2
            if i % P["every"] == 0 and i <= 128 - P["cend"] + P["every"]:
                a(f"v_mov_b32 {vPr}, {i}\nds_write_b32 {vFa}, {vPr} offset:{LPR}")

    landed = lambda tag: tag in seq[:pos[0]] and tag not in a.vm

    for _ in range(depth(0)):
        issue_next()
    stamp("burst")
    zero_stamps()
    srd_tail(SV, SO, SWS)
    a(f"""
    s_load_dword {sE}, s[{SWS}:{SWS + 1}], 0x{WS_E:x}
    s_mov_b32 {sCnt}, 0
    s_movk_i32 {sFF}, 0xff
    v_lshlrev_b32 {vVo}, 4, {vL}
    v_and_b32 v14, 1, {vL}
    v_lshlrev_b32 v14, 4, v14
    v_mov_b32 v15, 0xffff
    v_lshlrev_b32 v14, v14, v15
    v_bfe_u32 v15, {vL}, 1, 2
    """)
    for r in range(4):
        a(f"v_cmp_eq_u32 vcc, {r}, v15")
        a(f"v_cndmask_b32 {vM[r]}, 0, v14, vcc")
    for r in range(16):
        a("v_mov_b32 v%d, 0" % (BQ + r))
    a(f"""
    s_mov_b32 {sC}, {f32(128 ** -0.5 * math.log2(math.e))}
    v_lshlrev_b32 v13, 5, v13
    v_and_b32 v14, 16, {vL}
    s_lshl_b32 {sT0}, {sW}, 9
    v_add3_u32 {vB0}, v13, v14, {sT0}
    v_and_b32 {vT0}, 0xff, {vKo}
    """)
    if CT:
        a(f"""
        s_lshl_b32 {sT0}, {sW}, 2
        v_mov_b32 {vFa}, {sT0}
        ds_write_b32 {vFa}, v{BQ} offset:{LFL}
        s_mov_b64 vcc, 0
        """)
        armed[0] = 1
    while pos[0] < N1:
        issue_next()
        if pos[0] == depth(0) + 1:
            stamp("first")
    stamp("preq")
    a("s_barrier")
    for n in range(4):
        m = 0x000F000F << (4 * n)
        a(f"""
        s_mov_b32 exec_lo, 0x{m:x}
        s_mov_b32 exec_hi, 0x{m:x}
        ds_read_b128 {vr(BQ + 4 * n)}, {vT0} offset:{LQ}
        """)
    a("s_mov_b64 exec, -1")
    issue_next()
    a("s_waitcnt lgkmcnt(0)")
    stamp("q_ready")

    def score_group(G):
        acc = ACC if G % 2 == 0 else BT[0]
        for n in range(4):
            tag = ("k", 4 * G + n)
            c = "0" if n == 0 else vr(acc)
            a(f"v_mfma_f32_16x16x32_bf16 {vr(acc)}, {vr(sreg(tag))}, {vr(BQ + 4 * n)}, {c}")
            free_slots.append(slot_of[tag])

    def score_finish(G):
        acc = ACC if G % 2 == 0 else BT[0]
        a(f"v_mov_b32_dpp {vS[G]}, v{acc} quad_perm:[0,0,0,0] {FULL}")
        for r in range(1, 4):
            a(f"v_add_f32_dpp {vS[G]}, v{acc + r}, {vS[G]} quad_perm:[{r},{r},{r},{r}] {FULL}")
        if G == 1:
            a(f"v_max_f32 {vMx}, {vS[0]}, {vS[1]}")
        elif G > 1:
            a(f"v_max_f32 {vMx}, {vMx}, {vS[G]}")

    G = 0
    while G < 16:
        todo = []
        while len(todo) < P["catch"] and G + len(todo) < 16 and landed(("k", 4 * (G + len(todo)) + 3)):
            todo.append(G + len(todo))
        for i in range(0, len(todo), 2):
            for g in todo[i:i + 2]:
                score_group(g)
            for g in todo[i:i + 2]:
                score_finish(g)
        G += len(todo)
        if G < 16:
            issue_next()
    stamp("k_done")

    def allreduce_rows(op, reg, tmp):
        a(f"{op}_dpp {reg}, {reg}, {reg} row_ror:4 {FULL}")
        a(f"{op}_dpp {reg}, {reg}, {reg} row_ror:8 {FULL}")
        for sw in ("v_permlane16_swap_b32", "v_permlane32_swap_b32"):
            a(f"v_mov_b32 {tmp}, {reg}")
            a(f"{sw} {reg}, {tmp}")
            a(f"{op} {reg}, {reg}, {tmp}")

    issue_next(throttle=P["extra"] < 1)
    allreduce_rows("v_max_f32", vMx, vT0)
    a(f"v_mul_f32 v12, {sC}, {vMx}")
    for g in range(16):
        a(f"v_fma_f32 {vS[g]}, {vS[g]}, {sC}, -v12")
    for g in range(16):
        a(f"v_exp_f32 {vS[g]}, {vS[g]}")
    issue_next(throttle=P["extra"] < 2)
    a(f"v_add_f32 v13, {vS[0]}, {vS[1]}")
    a(f"v_add_f32 v14, {vS[2]}, {vS[3]}")
    for g in range(4, 16, 2):
        a(f"v_add_f32 v13, v13, {vS[g]}")
        a(f"v_add_f32 v14, v14, {vS[g + 1]}")
    a("v_add_f32 v13, v13, v14")
    allreduce_rows("v_add_f32", "v13", "v14")
    a(f"""
    s_lshl_b32 {sT0}, {sW}, 3
    v_mov_b32 v14, {sT0}
    v_min_u32 v12, -2, v12
    v_min_u32 v13, -2, v13
    s_mov_b64 exec, 1
    ds_write_b64 v14, v[12:13] offset:{LML}
    s_mov_b64 exec, -1
    """)
    stamp("p_ready")

    vTr, vAo, vYo, vTg = "v30", "v31", "v32", "v33"

    def wo_setup():
        a(f"""
        s_lshl_b32 {sA}, {sW}, 10
        s_addk_i32 {sA}, 0x{LWO:x}
        s_mul_i32 {sA2}, {sH}, {128 * 1280}
        s_mul_i32 {sT0}, {sCc}, 160
        s_add_u32 {sA2}, {sA2}, {sT0}
        s_movk_i32 {sT1}, 0x{1280 - 160:x}
        """)
        for n in range(5):
            a(f"""
            v_add_u32 {vT0}, {256 * n}, v0
            v_mul_u32_u24 {vT1}, 0x199a, {vT0}
            v_lshrrev_b32 {vT1}, 16, {vT1}
            v_lshlrev_b32 {vT0}, 4, {vT0}
            v_mad_u32_u24 v{WOA + n}, {vT1}, {sT1}, {vT0}
            """)

    def stage2_setup():
        rows = 4 if Z else 3
        gate_addr = (f"s_and_b32 {sGt}, s2, 7\ns_lshl_b32 {sGt}, {sGt}, 8\ns_add_u32 {sGt}, {sGt}, 0x{WS_B + 128:x}\n"
                     f"s_add_u32 {sT16}, {sE}, 1")
        if P["ysep"]:
            yline = (f"s_and_b32 {sT0}, {sH}, 15\ns_lshl_b32 {sT0}, {sT0}, 7\ns_add_u32 {sY}, {sY}, {sT0}\n"
                     f"s_and_b32 {sT0}, {sH}, 16\ns_lshl_b32 {sT0}, {sT0}, 15\ns_add_u32 {sY}, {sY}, {sT0}")
        else:
            yline = f"s_lshl_b32 {sT0}, {sH}, 7\ns_add_u32 {sY}, {sY}, {sT0}"
        a(f"""
        v_lshrrev_b32 v10, 4, {vL}
        v_bfe_u32 v11, {vL}, 2, 2
        v_lshl_add_u32 v11, v10, {rows}, v11
        v_mul_u32_u24 {vTr}, 160, v11
        v_and_b32 v11, 3, {vL}
        v_lshl_add_u32 {vTr}, v11, 3, {vTr}
        s_lshl_b32 {sT0}, {sCt}, 5
        v_add_u32 {vTr}, {sT0}, {vTr}
        v_lshlrev_b32 {vYo}, 2, {vL}
        s_mul_i32 {sY}, {sCc}, 5
        s_add_u32 {sY}, {sY}, {sCt}
        s_lshl_b32 {sY}, {sY}, 12
        {yline}
        s_add_u32 {sY}, {sY}, 0x{WS_Y:x}
        v_mov_b32 {vTg}, {sTag}
        """)
        if Z:
            a(f"""
            {oblock(vAo, "v10")}
            v_and_b32 v11, 15, {vL}
            v_lshl_add_u32 {vAo}, v11, 4, {vAo}
            {oslot(sOin)}
            {f"s_add_u32 {sOin2}, {sOin}, 0x{KOFF:x}" if P['och'] == 1 else ""}
            {gate_addr if G4 else ""}
            """)
        else:
            a(f"""
            v_and_b32 v11, 4, {vL}
            v_lshlrev_b32 v11, 6, v11
            v_lshl_add_u32 {vAo}, v10, 4, v11
            """)

    for n in range(64):
        tag = ("v", n)
        bt = BT[n & 1]
        if n % 4 == 0:
            a(f"v_cvt_pk_bf16_f32 {vS[n >> 2]}, {vS[n >> 2]}, {vS[n >> 2]}")
        if n == 5:
            wo_setup()
        if n == 7:
            tags()
            a(f"s_mov_b32 {sCt}, {sW}")
            if ACK:
                a(f"s_mov_b32 {sCons}, 0")
            stage2_setup()
        for r in range(4):
            a(f"v_and_b32_dpp v{bt + r}, {vS[n >> 2]}, {vM[r]} row_newbcast:{4 * (n & 3)} {FULL}")
        while not landed(tag):
            if pos[0] < len(seq) and pos[0] - seq.index(tag) <= depth_hi(pos[0]):
                issue_next()
            else:
                a.wait_vm(tag)
        if n in (32, 63):
            stamp("v%d" % n)
        c = "0" if n == 0 else vr(ACC)
        a(f"v_mfma_f32_16x16x32_bf16 {vr(ACC)}, {vr(bt)}, {vr(sreg(tag))}, {c}")
        free_slots.append(slot_of[tag])
    assert pos[0] == len(seq)
    a(f"""
    s_mov_b32 exec_hi, 0
    ds_write_b128 {vB0}, {vr(ACC)} offset:{LOP}
    s_mov_b32 exec_hi, -1
    s_waitcnt lgkmcnt(0)
    s_barrier
    """)
    stamp("B3")
    a.wait_vm_all()
    stamp("wo_in")

    a.label("L_stage2")
    a("s_barrier")
    stamp("B4")
    AW, AO = 40, 56
    if Z:
        for k in range(2):
            for hh in range(2):
                for half in range(2):
                    a(f"ds_read_b64_tr_b16 {vr(AW + 8 * hh + 4 * k + 2 * half, 2)}, {vTr} "
                      f"offset:{LWO + (64 * k + 8 * hh + 4 * half) * 160}")
        if P["mask2"]:
            a("s_mov_b64 vcc, -1")
        a.label("L_poll2")
        if G4:
            a(f"s_cmp_eq_u32 {sCons}, 0\ns_cbranch_scc1 L_nogl\ns_mov_b32 exec_hi, 0")
            a(f"buffer_load_dword v34, {vYo}, {srd(SWS)}, {sGt} offen sc1", counted=False)
            a.label("L_nogl")
            assert P["mask2"]
        if P["mask2"]:
            a("s_mov_b64 exec, vcc")
        a(f"buffer_load_dwordx4 {vr(AO)}, {vAo}, {srd(SWS)}, {sOin} offen sc1", counted=False)
        a(f"buffer_load_dwordx4 {vr(AO + 4)}, {vAo}, {srd(SWS)}, {sOin2 if P['och'] == 1 else sOin} offen{'' if P['och'] == 1 else ' offset:1024'} sc1", counted=False)
        if P["mask2"]:
            a("s_mov_b64 exec, -1")
        spin_guard("L_end")
        a(f"""
        s_waitcnt vmcnt(1) lgkmcnt(0)
        v_mfma_f32_16x16x32_bf16 v[16:19], {vr(AO)}, {vr(AW)}, 0
        v_mfma_f32_16x16x32_bf16 v[20:23], {vr(AO)}, {vr(AW + 8)}, 0
        v_max3_u32 v12, v{AO}, v{AO + 1}, v{AO + 2}
        s_waitcnt vmcnt(0)
        v_mfma_f32_16x16x32_bf16 v[16:19], {vr(AO + 4)}, {vr(AW + 4)}, v[16:19]
        v_mfma_f32_16x16x32_bf16 v[20:23], {vr(AO + 4)}, {vr(AW + 12)}, v[20:23]
        v_max3_u32 v13, v{AO + 3}, v{AO + 4}, v{AO + 5}
        v_max3_u32 v12, v12, v{AO + 6}, v{AO + 7}
        v_max_u32 v12, v12, v13
        v_cmp_eq_u32 vcc, -1, v12
        s_cbranch_vccnz L_poll2
        """)
        stamp("polled2")
        a(f"""
        v_add_f32 v16, v16, v18
        v_add_f32 v17, v21, v23
        v_add_f32 v18, v16, v17
        v_add_f32 v16, v16, v17
        v_permlane32_swap_b32 v16, v18
        v_add_f32 v16, v16, v18
        """)
    else:
        for ks in range(4):
            a(f"ds_read_b128 {vr(AO + 4 * ks)}, {vAo} offset:{LOB + 64 * ks}")
            for half in range(2):
                a(f"ds_read_b64_tr_b16 {vr(AW + 4 * ks + 2 * half, 2)}, {vTr} offset:{LWO + (32 * ks + 4 * half) * 160}")
        for ks in range(4):
            a(f"s_waitcnt lgkmcnt({9 - 3 * ks})")
            c = "0" if ks == 0 else "v[16:19]"
            a(f"v_mfma_f32_16x16x32_bf16 v[16:19], {vr(AO + 4 * ks)}, {vr(AW + 4 * ks)}, {c}")
    a("s_mov_b32 exec_hi, 0")
    a(f"v_bfi_b32 v16, {sFF}, {vTg}, v16")
    if Z and P["ybar"]:
        a("s_barrier")
    a(f"buffer_store_dword v16, {vYo}, {srd(SWS)}, {sY} offen sc1", counted=False)
    if Z and not P["ybar"] and not GATE and not ACK:
        a("s_barrier")
    stamp("y_pub")
    if ACK:
        a(f"s_cmp_eq_u32 {sCons}, 1\ns_cbranch_scc1 L_stage3")
    a("s_branch L_end")

    a.label("L_service")
    zero_stamps()
    if P["warm"]:
        a(f"""
        s_cmp_eq_u32 {sW}, 6
        s_cbranch_scc1 L_isl0
        """)
        a.label("L_warmed")
    srd_tail(SV, SO, SWS, SOUT)
    a(f"""
    s_mov_b32 {sCnt}, 0
    s_movk_i32 {sFF}, 0xff
    s_waitcnt lgkmcnt(0)
    """)
    if CT:
        assert Z
        a(f"""
        s_cmp_eq_u32 {sW}, 7
        s_cbranch_scc1 L_ctrl
        """)
    if Z:
        if P["ogrp"]:
            a(f"""
            s_and_b32 {sT0}, s2, 3
            s_cmp_eq_u32 {sT0}, 1
            s_cselect_b32 {sT0}, 0, 128
            s_cmp_lt_u32 s2, {sT0}
            """)
        else:
            a("s_cmp_lt_u32 s2, 96")
        if ACK:
            a(f"""
            s_cselect_b32 {sCons}, 0, 1
            s_cmp_ge_u32 {sW}, 6
            s_cbranch_scc1 L_end
            """)
        else:
            a(f"""
            s_cselect_b32 {sT0}, 6, 7
            s_cmp_ge_u32 {sW}, {sT0}
            s_cbranch_scc1 L_end
            """)
    a(f"s_load_dword {sE}, s[{SWS}:{SWS + 1}], 0x{WS_E:x}")
    if P["touch"]:
        a(f"""
        s_cmp_lg_u32 {sW}, 5
        s_cbranch_scc1 L_notouch
        s_mul_i32 {sA2}, {sH}, {128 * 1280}
        s_mul_i32 {sT0}, {sCc}, 160
        s_add_u32 {sA2}, {sA2}, {sT0}
        s_mov_b64 exec, 1
        """)
        a(f"buffer_load_dword v20, off, {srd(SV)}, {sKo} nt", counted=False)
        a(f"buffer_load_dword v21, off, {srd(SO)}, {sA2} nt", counted=False)
        a("s_mov_b64 exec, -1")
        a.label("L_notouch")

    def gather_setup():
        a(f"""
        v_bfe_u32 v8, {vL}, 3, 1
        v_lshrrev_b32 v9, 4, {vL}
        v_and_b32 v10, 7, {vL}
        v_lshl_add_u32 v2, v8, 2, v9
        v_lshlrev_b32 v2, 9, v2
        v_lshl_add_u32 v2, v10, 4, v2
        s_sub_u32 {sT1}, {sW}, 4
        s_lshl_b32 {sOin}, {sH}, 12
        s_lshl_b32 {sT0}, {sT1}, 7
        s_add_u32 {sOin}, {sOin}, {sT0}
        s_add_u32 {sOin}, {sOin}, 0x{WS_O:x}
        v_lshlrev_b32 v3, 8, v8
        v_lshl_add_u32 v3, v10, 3, v3
        v_lshl_add_u32 v3, v9, 1, v3
        s_lshl_b32 {sT0}, {sT1}, 6
        v_add_u32 v3, {sT0}, v3
        """)

    if not Z:
        gather_setup()
    if P["ysep"]:
        ylane = (f"v_bfe_u32 v5, {vL}, 1, 4\nv_lshlrev_b32 v5, 7, v5\nv_lshrrev_b32 v6, 5, {vL}\n"
                 f"v_lshl_add_u32 v5, v6, 19, v5")
    else:
        ylane = f"v_lshrrev_b32 v5, 1, {vL}\nv_lshlrev_b32 v5, 7, v5"
    if P["ogrp"]:
        a(f"""
        s_and_b32 {sT1}, s2, 7
        s_lshr_b32 {sT2}, {sT1}, 2
        s_add_u32 {sT2}, {sT2}, 8
        s_cmp_lt_u32 s2, 128
        s_cselect_b32 {sT1}, {sT2}, {sT1}
        s_bfe_u32 {sT0}, s2, 0x40003
        s_lshl_b32 {sA3}, {sT1}, 2
        s_lshr_b32 {sT2}, {sT0}, 2
        s_add_u32 {sA3}, {sA3}, {sT2}
        """)
    else:
        a(f"""
        s_lshr_b32 {sT0}, s2, 3
        s_sub_u32 {sT0}, {sT0}, 12
        s_and_b32 {sT1}, s2, 7
        s_mul_i32 {sA3}, {sT1}, 5
        s_lshr_b32 {sT2}, {sT0}, 2
        s_add_u32 {sA3}, {sA3}, {sT2}
        """)
    a(f"""
    s_lshl_b32 {sA2}, {sA3}, 5
    s_lshl_b32 {sA3}, {sA3}, 12
    s_and_b32 {sT2}, {sT0}, 3
    s_lshl_b32 {sT2}, {sT2}, 5
    s_add_u32 {sA3}, {sA3}, {sT2}
    s_add_u32 {sA3}, {sA3}, 0x{WS_Y:x}
    s_and_b32 {sT2}, {sT0}, 1
    s_lshl_b32 {sT2}, {sT2}, 4
    s_add_u32 {sA2}, {sA2}, {sT2}
    s_bfe_u32 {sT2}, {sT0}, 0x10001
    s_mul_i32 {sT2}, {sT2}, 1280
    s_add_u32 {sA2}, {sA2}, {sT2}
    {ylane}
    v_and_b32 v6, 1, {vL}
    v_lshl_add_u32 v5, v6, 4, v5
    v_lshlrev_b32 v6, 2, v6
    v_add_lshl_u32 v6, v12, v6, 1
    """)
    if P["touch"]:
        a(f"""
        s_cmp_lg_u32 {sCons if ACK else sW}, {1 if ACK else 6}
        s_cbranch_scc1 L_notouch2
        s_mov_b64 exec, 1
        """)
        a(f"buffer_load_dword v22, off, {srd(SOUT)}, {sA2}", counted=False)
        a("s_mov_b64 exec, -1")
        a.label("L_notouch2")
    a(f"""
    s_waitcnt vmcnt(0) lgkmcnt(0)
    s_mov_b32 {sCt}, 4
    """)
    tags()
    stage2_setup()
    a("s_barrier")
    a(f"s_cmp_eq_u32 {sW}, 5")
    a("s_barrier")
    stamp("B3")

    def untag_check(label):
        a(f"""
        s_waitcnt vmcnt(0)
        v_xor_b32 v16, {sTag}, v16
        v_xor_b32 v17, {sTag}, v17
        v_xor_b32 v18, {sTag}, v18
        v_xor_b32 v19, {sTag}, v19
        v_or3_b32 v12, v16, v17, v18
        v_bitop3_b32 v12, v12, {sFF}, v19 bitop3:0xc8
        v_cmp_ne_u32 vcc, 0, v12
        s_cbranch_vccnz {label}
        """)

    def fold_rows():
        a(f"""
        v_permlane32_swap_b32 v16, v18
        v_permlane32_swap_b32 v17, v19
        v_add_f32 v16, v16, v18
        v_add_f32 v17, v17, v19
        v_permlane16_swap_b32 v16, v17
        v_add_f32 v16, v16, v17
        """)

    if ACK:
        a("s_branch L_stage2")
        a.label("L_stage3")
        if G4:
            a(f"""
            v_cmp_eq_u32 vcc, {sT16}, v34
            s_mov_b32 {sT1}, 0
            s_bcnt1_i32_b32 {sT0}, vcc_lo
            s_cmp_lt_u32 {sT0}, {P['gmin']}
            s_cbranch_scc1 L_gate
            {f"s_sleep {P['sl_late']}" if P['sl_late'] else ""}
            s_branch L_gated
            """)
            a.label("L_gate")
            a(f"buffer_load_dword v34, {vYo}, {srd(SWS)}, {sGt} offen sc1", counted=False)
            a(f"""
            s_add_u32 {sT1}, {sT1}, 1
            s_cmp_ge_u32 {sT1}, {P['gtries']}
            s_cbranch_scc1 L_gated
            s_waitcnt vmcnt(0)
            v_cmp_ne_u32 vcc, {sT16}, v34
            s_cbranch_vccnz L_gate
            s_cmp_eq_u32 {sT1}, 1
            s_cbranch_scc1 L_gated
            {f"s_sleep {P['sl_early']}" if P['sl_early'] else ""}
            """)
            a.label("L_gated")
            a("s_mov_b32 exec_hi, -1")
        else:
            a("s_mov_b32 exec_hi, -1\ns_waitcnt vmcnt(0)")
        stamp("gated")
    elif Z:
        a(f"""
        s_cbranch_scc1 L_stage2
        s_barrier
        {B5}
        """)
        if GATE:
            assert not P["ybar"]
            a(f"""
            s_and_b32 {sA}, s2, 7
            s_lshl_b32 {sA}, {sA}, 8
            s_add_u32 {sA}, {sA}, 0x{WS_B + 128:x}
            s_add_u32 {sT16}, {sE}, 1
            s_mov_b32 {sT1}, 0
            s_mov_b32 exec_hi, 0
            """)
            a.label("L_gate")
            a(f"buffer_load_dword v16, {vYo}, {srd(SWS)}, {sA} offen sc1", counted=False)
            a(f"""
            s_add_u32 {sT1}, {sT1}, 1
            s_cmp_ge_u32 {sT1}, {P['gtries']}
            s_cbranch_scc1 L_gated
            s_waitcnt vmcnt(0)
            v_cmp_ne_u32 vcc, {sT16}, v16
            s_cbranch_vccnz L_gate
            """)
            a.label("L_gated")
            a("s_mov_b32 exec_hi, -1")
            stamp("gated")
    else:
        a.label("L_gather")
        a(f"buffer_load_dwordx4 v[16:19], v2, {srd(SWS)}, {sOin} offen sc1", counted=False)
        spin_guard("L_gathered")
        untag_check("L_gather")
        a.label("L_gathered")
        stamp("polled2")
        fold_rows()
        a(f"""
        v_cvt_pk_bf16_f32 v16, v16, v16
        ds_write_b16 v3, v16 offset:{LOB}
        s_cmp_eq_u32 {sW}, 5
        s_waitcnt lgkmcnt(0)
        s_cbranch_scc1 L_stage2
        s_barrier
        s_cmp_lg_u32 {sW}, 6
        s_cbranch_scc1 L_end
        s_cmp_lt_u32 s2, 96
        s_cbranch_scc1 L_end
        """)

    if P["p3sleep"]:
        a(f"s_sleep {P['p3sleep']}")
    a.label("L_poll3")
    if P["p3gap"]:
        a(f"s_sleep {P['p3gap']}")
    a(f"buffer_load_dwordx4 v[16:19], v5, {srd(SWS)}, {sA3} offen sc1", counted=False)
    spin_guard("L_end")
    if P["mask3"]:
        a(f"""
        s_waitcnt vmcnt(0)
        v_xor_b32 v16, {sTag}, v16
        v_xor_b32 v17, {sTag}, v17
        v_xor_b32 v18, {sTag}, v18
        v_xor_b32 v19, {sTag}, v19
        v_or3_b32 v12, v16, v17, v18
        v_bitop3_b32 v12, v12, {sFF}, v19 bitop3:0xc8
        v_cmp_ne_u32 vcc, 0, v12
        s_and_b64 exec, exec, vcc
        s_cbranch_scc1 L_poll3
        s_mov_b64 exec, -1
        """)
    else:
        untag_check("L_poll3")
    stamp("polled3")
    fold_rows()
    a(f"""
    v_add_f32_dpp v16, v16, v16 row_ror:8 {FULL}
    v_add_f32_dpp v16, v16, v16 row_ror:4 {FULL}
    v_add_f32_dpp v16, v16, v16 row_ror:2 {FULL}
    s_mov_b32 exec_lo, 0x00030003
    s_mov_b32 exec_hi, 0x00030003
    v_cvt_pk_bf16_f32 v16, v16, v16
    """)
    a(f"buffer_store_short v16, v6, {srd(SOUT)}, {sA2} offen", counted=False)
    a(f"""
    s_cmp_lg_u32 s2, 0xff
    s_cbranch_scc1 L_end
    s_mov_b64 exec, 1
    s_add_u32 {sE}, {sE}, 1
    v_mov_b32 v12, {sE}
    s_mov_b32 {sT0}, 0x{WS_E:x}
    """)
    a(f"buffer_store_dword v12, off, {srd(SWS)}, {sT0}", counted=False)
    a("s_branch L_end")

    if CT:
        a.label("L_ctrl")
        a(f"""
        s_load_dword {sE}, s[{SWS}:{SWS + 1}], 0x{WS_E:x}
        s_and_b32 {sA}, s2, 7
        s_lshl_b32 {sA}, {sA}, 8
        s_add_u32 {sA}, {sA}, 0x{WS_B:x}
        s_lshr_b32 {sA2}, s2, 3
        s_lshl_b32 {sA2}, {sA2}, 2
        s_add_u32 {sA2}, {sA2}, {sA}
        v_lshlrev_b32 v10, 2, {vL}
        v_mov_b32 v9, 0
        ds_write_b32 v9, v9 offset:{LPR}
        s_mov_b32 {sA3}, {N1 - P['cbar']}
        s_mov_b32 exec_hi, 0
        s_mov_b32 {sFF}, 0xffff
        s_waitcnt lgkmcnt(0)
        s_add_u32 {sT16}, {sE}, 1
        s_and_b32 {sT16}, {sT16}, {sFF}
        """)
        a.label("L_ctl")
        a(f"ds_read_b32 v11, v9 offset:{LPR}")
        spin_guard("L_end")
        a(f"""
        s_waitcnt lgkmcnt(0)
        v_readfirstlane_b32 {sT0}, v11
        v_lshl_or_b32 v12, v11, 16, {sT16}
        s_cmp_ge_u32 {sT0}, {sA3}
        s_cbranch_scc1 L_ctlev
        s_mov_b32 exec_lo, 1
        """)
        a(f"buffer_store_dword v12, off, {srd(SWS)}, {sA2}", counted=False)
        a("s_mov_b32 exec_lo, -1")
        a(f"buffer_load_dword v13, v10, {srd(SWS)}, {sA} offen sc1", counted=False)
        a(f"""
        s_lshl_b32 {sT0}, {sT0}, 5
        s_add_u32 {sT0}, {sT0}, {P['theta']}
        s_waitcnt vmcnt(0)
        v_and_b32 v14, {sFF}, v13
        v_cmp_eq_u32 vcc, {sT16}, v14
        v_lshrrev_b32 v13, 16, v13
        v_cndmask_b32 v13, v11, v13, vcc
        v_add_u32_dpp v13, v13, v13 quad_perm:[1,0,3,2] {FULL}
        v_add_u32_dpp v13, v13, v13 quad_perm:[2,3,0,1] {FULL}
        v_add_u32_dpp v13, v13, v13 row_ror:4 {FULL}
        v_add_u32_dpp v13, v13, v13 row_ror:8 {FULL}
        v_readlane_b32 {sT1}, v13, 0
        v_readlane_b32 {sT2}, v13, 16
        s_add_u32 {sT1}, {sT1}, {sT2}
        s_cmp_gt_i32 {sT1}, {sT0}
        s_cselect_b32 {sT1}, 1, 0
        v_mov_b32 v14, {sT1}
        s_mov_b32 exec_lo, 15
        ds_write_b32 v10, v14 offset:{LFL}
        s_mov_b32 exec_lo, -1
        s_branch L_ctl
        """)
        a.label("L_ctlev")
        a(f"""
        s_cmp_eq_u32 {sA3}, {128 - P['cend']}
        s_cbranch_scc1 L_ctlend
        s_mov_b32 {sA3}, {128 - P['cend']}
        s_barrier
        s_branch L_ctl
        """)
        a.label("L_ctlend")
        a(f"""
        s_or_b32 {sT0}, {sT16}, 0x{128 << 16:x}
        v_mov_b32 v12, {sT0}
        s_mov_b32 exec_lo, 1
        """)
        a(f"buffer_store_dword v12, off, {srd(SWS)}, {sA2}", counted=False)
        a(f"s_barrier\ns_barrier\n{B5}s_branch L_end")

    a.label("L_lead")
    a.vm = lead_vm
    zero_stamps()
    srd_tail(SWS, SOUT)
    a(f"""
    s_setprio 0
    s_load_dword {sE}, s[{SWS}:{SWS + 1}], 0x{WS_E:x}
    s_mov_b32 {sCnt}, 0
    s_movk_i32 {sFF}, 0xff
    s_lshl_b32 {sT2}, {sH}, 3
    s_add_u32 {sT2}, {sT2}, {sCc}
    s_lshl_b32 {sMl}, {sT2}, 7
    s_add_u32 {sMl}, {sMl}, 0x{WS_ML:x}
    v_lshlrev_b32 v4, 2, {vL}
    v_mov_b32 v16, -1
    s_mov_b64 exec, 0xff
    ds_write_b32 v4, v16 offset:{LML}
    s_mov_b64 exec, -1
    v_bfe_u32 v15, {vL}, 1, 2
    v_and_b32 v14, 1, {vL}
    v_cmp_eq_u32 vcc, 1, v14
    v_mov_b32 v5, 0x0c0c0100
    v_mov_b32 v6, 0x01000c0c
    v_cndmask_b32 v5, v5, v6, vcc
    v_mov_b32 v6, 0x0c0c0302
    v_mov_b32 v7, 0x03020c0c
    v_cndmask_b32 v6, v6, v7, vcc
    v_mov_b32 v7, 0x0c0c0c0c
    """)
    if Z:
        a(f"""
        {oslot(sA3)}
        s_and_b32 {sT0}, {sS}, 2
        s_lshl_b32 {sT0}, {sT0}, 6
        s_add_u32 {sA3}, {sA3}, {sT0}
        s_lshl_b32 {sT0}, {sB}, 6
        s_add_u32 {sA3}, {sA3}, {sT0}
        s_and_b32 {sT0}, {sS}, 1
        s_lshl_b32 {sT0}, {sT0}, 5
        s_add_u32 {sA3}, {sA3}, {sT0}
        v_bfe_u32 v14, {vL}, 3, 2
        {oblock("v4", "v14")}
        v_lshrrev_b32 v14, 5, {vL}
        v_mul_u32_u24 v14, 0x{KOFF:x}, v14
        v_add_u32 v4, v4, v14
        v_and_b32 v14, 7, {vL}
        v_lshl_add_u32 v4, v14, 2, v4
        """)
    else:
        a(f"""
        s_lshl_b32 {sA3}, {sT2}, 9
        s_add_u32 {sA3}, {sA3}, 0x{WS_O:x}
        """)
    for r in range(4):
        a(f"v_cmp_eq_u32 vcc, {r}, v15")
        a(f"v_cndmask_b32 v{SEL + r}, v7, v5, vcc")
        a(f"v_cndmask_b32 v{SEL + 4 + r}, v7, v6, vcc")
    a(f"""
    s_lshl_b32 {sA}, {sH}, 13
    s_add_u32 {sA}, {sA}, 0x{WS_Q:x}
    s_lshl_b32 {sT0}, {sB}, 12
    s_add_u32 {sA2}, {sA}, {sT0}
    s_lshl_b32 {sT0}, {sCc}, 9
    s_add_u32 {sA}, {sA}, {sT0}
    v_lshrrev_b32 v5, 5, {vL}
    v_lshlrev_b32 v5, 12, v5
    v_and_b32 v6, 31, {vL}
    v_lshl_add_u32 v5, v6, 4, v5
    v_lshlrev_b32 v6, 4, {vL}
    s_waitcnt lgkmcnt(0)
    s_add_u32 {sTag}, {sE}, 1
    s_and_b32 {sT16}, {sTag}, 0xffff
    s_and_b32 {sTag}, {sTag}, 0xff
    s_getreg_b32 {sT0}, hwreg(HW_REG_XCC_ID, 0, 3)
    s_lshl_b32 {sT0}, {sT0}, 4
    s_and_b32 {sTq}, {sTag}, 15
    s_or_b32 {sTq}, {sTq}, {sT0}
    v_mov_b32 v7, {sTq}
    """)
    a.wait_vm("x2")
    QA, QB = 8, [40, 44]
    for t in range(20):
        bt = QB[t & 1]
        for r in range(4):
            a(f"v_perm_b32 v{bt + r}, v{XR + (t >> 1)}, v{XR + (t >> 1)}, v{SEL + 4 * (t & 1) + r}")
        a.wait_vm(("q", t))
        c = "0" if t == 0 else vr(QA)
        a(f"v_mfma_f32_16x16x32_bf16 {vr(QA)}, {vr(bt)}, {vr(WQ + 4 * t)}, {c}")
    for r in range(4):
        a(f"v_bfi_b32 v{QA + r}, {sFF}, v7, v{QA + r}")

    def q_loads():
        for k in range(4):
            a(f"buffer_load_dwordx4 {vr(48 + 4 * k)}, v6, {srd(SWS)}, {sA2} offen offset:{1024 * k} sc1", counted=False)

    def q_check(label):
        a("v_or3_b32 v20, v48, v49, v50")
        for k in range(51, 63, 2):
            a(f"v_or3_b32 v20, v20, v{k}, v{k + 1}")
        a(f"""
        v_bitop3_b32 v20, v20, {sFF}, v63 bitop3:0xc8
        v_cmp_ne_u32 vcc, 0, v20
        s_cbranch_vccnz {label}
        """)

    def dual_store(text, name, local_pol=""):
        a(f"s_cmp_eq_u32 {sLoc}, 0")
        a(f"s_cbranch_scc1 L_{name}_g")
        a(text + local_pol, counted=False)
        a(f"s_branch L_{name}_d")
        a.label(f"L_{name}_g")
        a(text + " sc1", counted=False)
        a.label(f"L_{name}_d")

    a(f"buffer_store_dwordx4 {vr(QA)}, v5, {srd(SWS)}, {sA} offen", counted=False)
    stamp("q_pub")
    a(f"s_mov_b32 {sLoc}, 1")
    a.label("L_pollq")
    a(f"""
    s_cmp_ge_u32 {sCnt}, {P['qtries']}
    s_cbranch_scc1 L_qglobal
    s_add_u32 {sCnt}, {sCnt}, 1
    """)
    q_loads()
    a("s_waitcnt vmcnt(0)")
    for k in range(16):
        a(f"v_xor_b32 v{48 + k}, {sTq}, v{48 + k}")
    q_check("L_pollq")
    a.label("L_qdone")
    a("s_waitcnt vmcnt(0)")
    for x, y in ((48, 52), (56, 60), (48, 56)):
        a(f"v_pk_add_f32 {vr(x, 2)}, {vr(x, 2)}, {vr(y, 2)}")
        a(f"v_pk_add_f32 {vr(x + 2, 2)}, {vr(x + 2, 2)}, {vr(y + 2, 2)}")
    a(f"""
    v_permlane32_swap_b32 v48, v50
    v_permlane32_swap_b32 v49, v51
    v_add_f32 v48, v48, v50
    v_add_f32 v49, v49, v51
    v_lshlrev_b32 v20, 4, v13
    v_bfe_u32 v21, {vL}, 4, 1
    v_lshl_add_u32 v20, v21, 3, v20
    v_lshrrev_b32 v21, 5, {vL}
    v_lshl_add_u32 v20, v21, 2, v20
    v_cvt_pk_bf16_f32 v48, v48, v49
    ds_write_b32 v20, v48 offset:{LQ}
    """)
    if Z:
        dual_store(f"buffer_store_dword v16, v4, {srd(SWS)}, {sA3} offen", "clr")
    a("s_waitcnt lgkmcnt(0)")
    stamp("preq")
    a("s_barrier")
    a(f"""
    v_and_b32 v20, 3, {vL}
    v_lshlrev_b32 v20, 3, v20
    """)
    a.label("L_pollml")
    a(f"""
    s_sleep 4
    ds_read_b64 v[22:23], v20 offset:{LML}
    """)
    spin_guard("L_mldone")
    a(f"""
    s_waitcnt lgkmcnt(0)
    v_max_u32 v24, v22, v23
    v_cmp_eq_u32 vcc, -1, v24
    s_cbranch_vccnz L_pollml
    """)
    a.label("L_mldone")
    a(f"""
    s_waitcnt vmcnt(0) lgkmcnt(0)
    v_max_f32_dpp v24, v22, v22 quad_perm:[1,0,3,2] {FULL}
    v_max_f32_dpp v24, v24, v24 quad_perm:[2,3,0,1] {FULL}
    v_sub_f32 v26, v22, v24
    v_exp_f32 v26, v26
    v_mul_f32 v25, v26, v23
    v_add_f32_dpp v25, v25, v25 quad_perm:[1,0,3,2] {FULL}
    v_add_f32_dpp v25, v25, v25 quad_perm:[2,3,0,1] {FULL}
    s_mov_b32 {sT0}, 0xffff0000
    v_mov_b32 v21, {sT16}
    v_and_or_b32 v36, v24, {sT0}, v21
    v_lshl_or_b32 v37, v24, 16, v21
    v_and_or_b32 v38, v25, {sT0}, v21
    v_lshl_or_b32 v39, v25, 16, v21
    s_lshl_b32 {sT0}, {sB}, 2
    v_xor_b32 v20, {sT0}, {vL}
    v_lshlrev_b32 v20, 7, v20
    s_mov_b64 exec, 0xff
    """)
    dual_store(f"buffer_store_dwordx4 v[36:39], v6, {srd(SWS)}, {sMl} offen", "ml")
    a(f"""
    s_mov_b64 exec, {0xff if Z else 15}
    s_andn2_b32 {sMl}, {sMl}, 0x3ff
    """)
    stamp("ml_pub")
    a.label("L_pollml2")
    a(f"s_sleep {P['mlsleep']}")
    a(f"buffer_load_dwordx4 v[40:43], v20, {srd(SWS)}, {sMl} offen sc1", counted=False)
    spin_guard("L_ml2done")
    a(f"""
    s_waitcnt vmcnt(0)
    v_xor_b32 v40, {sT16}, v40
    v_xor_b32 v41, {sT16}, v41
    v_xor_b32 v42, {sT16}, v42
    v_xor_b32 v43, {sT16}, v43
    v_or3_b32 v24, v40, v41, v42
    v_or_b32 v24, v24, v43
    v_lshlrev_b32 v24, 16, v24
    v_cmp_ne_u32 vcc, 0, v24
    s_cbranch_vccnz L_pollml2
    """)
    a.label("L_ml2done")
    a(f"""
    s_waitcnt vmcnt(0)
    v_lshrrev_b32 v41, 16, v41
    v_lshrrev_b32 v43, 16, v43
    v_or_b32 v28, v40, v41
    v_or_b32 v29, v42, v43
    v_max_f32_dpp v24, v28, v28 quad_perm:[1,0,3,2] {FULL}
    v_max_f32_dpp v24, v24, v24 quad_perm:[2,3,0,1] {FULL}
    v_sub_f32 v26, v28, v24
    v_sub_f32 v27, v22, v24
    v_exp_f32 v26, v26
    v_exp_f32 v27, v27
    v_mul_f32 v25, v26, v29
    v_add_f32_dpp v25, v25, v25 quad_perm:[1,0,3,2] {FULL}
    v_add_f32_dpp v25, v25, v25 quad_perm:[2,3,0,1] {FULL}
    v_rcp_f32 v25, v25
    v_mul_f32 v27, v27, v25
    """)
    sG = [sKo, sC, sOff, sA]
    for w in range(4):
        a(f"v_readlane_b32 {sG[w]}, v27, {w}")
    a("s_mov_b64 exec, -1")
    a(f"v_lshlrev_b32 v20, 3, {vL}")
    if not Z:
        gather_setup()
        a(f"s_mov_b32 {sCt}, 4")
        stage2_setup()
        a(f"v_mov_b32 v5, 0\nv_mov_b32 v6, 0")
    if GATE or G4:
        a(f"""
        s_and_b32 {sA2}, s2, 7
        s_lshl_b32 {sA2}, {sA2}, 8
        s_lshr_b32 {sT0}, s2, 3
        s_lshl_b32 {sT0}, {sT0}, 2
        s_add_u32 {sA2}, {sA2}, {sT0}
        s_add_u32 {sA2}, {sA2}, 0x{WS_B + 128:x}
        s_add_u32 {sT0}, {sE}, 1
        v_mov_b32 v21, {sT0}
        """)
    stamp("ml_done")
    a(f"s_cmp_eq_u32 {sLoc}, 0")
    a("s_barrier")
    stamp("B3")
    for w in range(4):
        a(f"ds_read_b64 {vr(40 + 2 * w, 2)}, v20 offset:{LOP + 512 * w}")
    for w in range(4):
        a(f"s_waitcnt lgkmcnt({3 - w})")
        op = "v_mul_f32" if w == 0 else "v_fmac_f32"
        a(f"{op} v36, {sG[w]}, v{40 + 2 * w}")
        a(f"{op} v37, {sG[w]}, v{41 + 2 * w}")
    if Z:
        a("v_cvt_pk_bf16_f32 v36, v36, v37")
        a("v_min_u32 v36, -2, v36")
        ost = f"buffer_store_dword v36, v4, {srd(SWS)}, {sA3} offen"
        nxt = "s_branch L_mark" if GATE or G4 else f"s_barrier\n{B5}s_branch L_end"
    else:
        a(f"v_bfi_b32 v36, {sFF}, {vTg}, v36")
        a(f"v_bfi_b32 v37, {sFF}, {vTg}, v37")
        ost = f"buffer_store_dwordx2 v[36:37], v20, {srd(SWS)}, {sA3} offen"
        nxt = "s_branch L_gather"
    a("s_cbranch_scc1 L_o_g")
    a(ost + pol("opol"), counted=False)
    stamp("o_pub")
    if GATE or G4:
        a.label("L_mark")
        a("s_mov_b64 exec, 1")
        if GATE == 1 or G4:
            a("s_barrier")
        a(f"buffer_store_dword v21, off, {srd(SWS)}, {sA2}", counted=False)
        if GATE == 2:
            a("s_barrier")
        a("s_branch L_end")
    else:
        a(nxt)
    a.label("L_o_g")
    a(ost + " sc1", counted=False)
    stamp("o_pub")
    a(nxt)
    a.hook = None
    if P["warm"]:
        a.label(f"L_isl{islands[0]}")
        a("s_branch L_warmed")

    a.label("L_qglobal")
    a(f"s_mov_b32 {sLoc}, 0")
    for r in range(4):
        a(f"v_or_b32 v{QA + r}, 0x80, v{QA + r}")
    a(f"buffer_store_dwordx4 {vr(QA)}, v5, {srd(SWS)}, {sA} offen sc1", counted=False)
    a(f"s_movk_i32 {sT0}, 0xf0")
    a.label("L_pollqg")
    q_loads()
    spin_guard("L_qdone")
    a("s_waitcnt vmcnt(0)")
    for k in range(16):
        a(f"""
        v_bfe_i32 v20, v{48 + k}, 7, 1
        v_and_b32 v20, {sT0}, v20
        v_xor_b32 v{48 + k}, {sTq}, v{48 + k}
        v_bfi_b32 v{48 + k}, v20, 0, v{48 + k}
        """)
    q_check("L_pollqg")
    a("s_branch L_qdone")

    a.label("L_end")
    if diag:
        stamp("end")
        a(f'''
        s_cmp_lg_u32 s2, {diag[0]}
        s_cbranch_scc1 L_exit
        s_cmp_lg_u32 {sW}, {diag[1]}
        s_cbranch_scc1 L_exit
        s_memrealtime s[64:65]
        s_waitcnt lgkmcnt(0)
        s_sub_u32 s66, s62, s60
        s_mul_i32 s66, s66, {diag[4]}
        s_add_u32 s66, s66, 300
        s_min_u32 s66, s66, 100000
        ''')
        a.label("L_diag")
        a('''
        s_memrealtime s[68:69]
        s_waitcnt lgkmcnt(0)
        s_sub_u32 s67, s68, s64
        s_cmp_lt_u32 s67, s66
        s_cbranch_scc1 L_diag
        ''')
    if P["stamps"]:
        a("s_mov_b64 exec, -1")
        stamp("end")
        a("s_waitcnt vmcnt(0)")
        stamp("drained")
        a("s_getreg_b32 %s, hwreg(HW_REG_XCC_ID)" % sT1)
        a("s_getreg_b32 %s, hwreg(HW_REG_HW_ID)" % sT2)
        a("s_waitcnt lgkmcnt(0)")
        a("v_mov_b32 v12, 0")
        for k in range(len(names)):
            a("v_writelane_b32 v12, s%d, %d" % (ST0 + 2 * k, k))
        a("v_writelane_b32 v12, %s, 29" % sCnt)
        a("v_writelane_b32 v12, %s, 30" % sT1)
        a("v_writelane_b32 v12, %s, 31" % sT2)
        a(f"""
        s_lshl_b32 {sT0}, s2, 3
        s_add_u32 {sT0}, {sT0}, {sW}
        s_lshl_b32 {sT0}, {sT0}, 7
        s_add_u32 {sT0}, {sT0}, 0x100000
        v_lshlrev_b32 v13, 2, {vL}
        s_mov_b32 exec_hi, 0
        """)
        a(f"buffer_store_dword v12, v13, {srd(SWS)}, {sT0} offen", counted=False)
    a.label("L_exit")
    a("s_endpgm")

    body = a.text()
    gen.nbytes = a.nbytes
    if not P["stamps"] and not diag:
        body = body.replace("    s_branch L_end\n", "    s_endpgm\n")
    out = HEADER
    out += "; @launch grid=(256,1,1) block=(512,1,1) lds=%d\n" % LDS
    if names:
        out += "; stamps: " + " ".join(names) + "\n"
    pad = ".p2align 12\n.fill %d, 4, 0xbf810000\n" % ((4096 - 768) // 4) if P["align"] else ""
    out += f""".amdgcn_target "amdgcn-amd-amdhsa--gfx950"
.text
.globl {NAME}_kernel
{pad}.p2align 8
.type {NAME}_kernel,@function
{NAME}_kernel:
"""
    out += body
    out += f""".section .rodata,"a"
.p2align 6
.amdhsa_kernel {NAME}_kernel
  .amdhsa_next_free_vgpr 256
  .amdhsa_next_free_sgpr 102
  .amdhsa_accum_offset 256
  .amdhsa_group_segment_fixed_size 0
  .amdhsa_kernarg_size 64
  .amdhsa_user_sgpr_count 2
  .amdhsa_user_sgpr_kernarg_segment_ptr 1
  .amdhsa_system_sgpr_workgroup_id_x 1
  .amdhsa_float_denorm_mode_32 3
.end_amdhsa_kernel
"""
    return out


if __name__ == "__main__":
    path = sys.argv[1]
    kw = {}
    for arg in sys.argv[2:]:
        k, v = arg.split("=", 1)
        kw[k] = int(v) if v.lstrip("-").isdigit() else v
    open(path, "w").write(gen(**kw))
```

```python
import sys
import math
import struct
from asmlib import Asm

NAME = "standalone__sliding_block_cached__decode"
HEADER = open("cdna_kernels/%s.s.ref" % NAME).read().split("; Override launch")[0]

DEFAULTS = dict(
    stamps=0, keep="",
    jitter="",
    pat="n0,s0,r0,r1,n1^w0,n0^w1,b0^n2^n5,n1^w1,n0^s1,h3^n2^n4,n3,n4",
    D=5, dhi=7, nend=2, N1=46, extra=2,
    theta=-192, cfrom=12, cend=6, cbar=8,
    qtries=16, limit=0x100000,
    outpol='', wb=0, opol='', preout=1, eb=1, wbar=0, hiend=0, abl='', wopol='nt', xwhen=1,
)

DOC = """\
;
;
; on entry and advances on exit.  Inside a head they are ordinary stores read back with sc1 loads once
;
"""


def f32(x):
    return "0x%08x" % struct.unpack("<I", struct.pack("<f", x))[0]


def scatter(pat, kind, val):
    out = 0
    for i, terms in enumerate(pat):
        for p in terms.split("^"):
            if p[0] == kind:
                out ^= ((val >> int(p[1:])) & 1) << (8 + i)
    return out


def pack_moves(moves):
    groups = []
    for mv in moves:
        for g in groups:
            t = g + [mv]
            bits = [sb + sh for sh in {d - s for s, d in t} for sb in {s for s, _ in t}]
            if len(bits) == len(set(bits)) and max(bits) < 32:
                g.append(mv)
                break
        else:
            groups.append([mv])
    return groups


def gen(**kw):
    P = dict(DEFAULTS)
    P.update(kw)
    a = Asm()
    c_ = a.comment
    D, DHI, N1 = P["D"], P["dhi"], P["N1"]
    FULL = "row_mask:0xf bank_mask:0xf"
    pat = P["pat"].split(",")
    R0 = scatter(pat, "r", 1)
    RSH = R0.bit_length() - 1
    assert R0 == 1 << RSH and pat[RSH - 8] == "r0" and pat[RSH - 7] == "r1" and scatter(pat, "r", 2) == 2 * R0
    assert len({scatter(pat, "n", n) ^ scatter(pat, "w", w) ^ scatter(pat, "s", s_) ^ scatter(pat, "r", r)
                for n in range(64) for w in range(4) for s_ in range(4) for r in range(4)}) == 4096

    SX, SK, SV, SQ, SO, SOUT, SWS = 4, 8, 12, 16, 20, 24, 28
    KARG = {SK: 8, SQ: 24, SX: 0, SV: 16, SWS: 56, SO: 32, SOUT: 40}
    SIZE = {SX: 2560, SK: 1 << 28, SV: 1 << 28, SQ: 640 * 8192, SO: 4096 * 1280, SOUT: 2560, SWS: 1 << 30}
    srd = lambda n: "s[%d:%d]" % (n, n + 3)
    vr = lambda n, k=4: "v[%d:%d]" % (n, n + k - 1)
    sOut, sW, sH, sCc = "s3", "s32", "s33", "s34"
    sKo, sOff, sT0, sT1, sT2, sC, sCnt, sE = "s35", "s36", "s37", "s38", "s39", "s40", "s41", "s42"
    sA, sA2, sA3, sCt, sY, sOin, s31f = "s43", "s44", "s45", "s46", "s47", "s48", "s49"
    sMd, sMa = "s[50:51]", "s[52:53]"
    sFF, sT16, sLoc, sTq, sMl = "s50", "s51", "s52", "s53", "s54"
    ST0 = 56

    WS_O, WS_Q, WS_ACC, WS_ML, WS_B, WS_F, WS_E = 0, 0x40000, 0x80000, 0xc0000, 0xc8000, 0xcc000, 0xd0000
    LQ, LML, LFL, LPR, LOP, LWO = 0, 256, 320, 352, 512, 4096
    LDS = LWO + 20480

    names = []
    keep = P["keep"].split(",") if P["keep"] else None

    def stamp(name):
        for j in P["jitter"].split(","):
            f = j.split(":")
            if f[0] == name:
                n = len(a.lines)
                a(f"s_mul_i32 s100, s2, 0x9e3779b1\ns_add_u32 s100, s100, {sW}\ns_mul_i32 s100, s100, 0x85ebca6b")
                a(f"s_lshr_b32 s100, s100, {32 - int(f[1])}")
                a.label(f"L_j{n}")
                a(f"s_sleep 8\ns_sub_u32 s100, s100, 1\ns_cbranch_scc0 L_j{n}")
        if not P["stamps"] or (keep and name not in keep + ["entry", "drained"]):
            return
        if name not in names:
            names.append(name)
        k = names.index(name)
        assert ST0 + 2 * k + 1 <= 99, "too many stamps"
        a("s_memrealtime s[%d:%d]" % (ST0 + 2 * k, ST0 + 2 * k + 1))

    def zero_stamps():
        if P["stamps"]:
            for k in range(ST0 + 2, 100, 2):
                a("s_mov_b32 s%d, 0" % k)

    END = "s_branch L_end" if P["stamps"] else "s_endpgm"

    def srd_tail(*which):
        for s in which:
            a("s_mov_b32 s%d, 0x%x" % (s + 2, SIZE[s]))
            a("s_mov_b32 s%d, 0x20000" % (s + 3))

    def spin_guard(label):
        a(f"""
        s_add_u32 {sCnt}, {sCnt}, 1
        s_cmp_ge_u32 {sCnt}, 0x{P['limit']:x}
        s_cbranch_scc1 {label}
        """)

    def load_epoch():
        a(f"s_load_dword {sE}, s[{SWS}:{SWS + 1}], 0x{WS_E:x}")
        a(f"s_mov_b32 {sCnt}, 0")

    def mem(text):
        a(text, counted=False)

    vL = "v1"
    stamp("entry")
    for s in (SK, SQ, SX, SV, SWS, SO, SOUT):
        a("s_load_dwordx2 s[%d:%d], s[0:1], %d" % (s, s + 1, KARG[s]))
    a(f"""
    v_lshrrev_b32 v12, 6, v0
    s_cmp_ge_u32 s2, 0x100
    s_cbranch_scc1 L_exit
    v_readfirstlane_b32 {sW}, v12
    s_and_b32 {sH}, s2, 31
    s_lshr_b32 {sCc}, s2, 5
    s_cmp_lt_u32 {sW}, 4
    s_cbranch_scc1 L_stream
    v_and_b32 {vL}, 63, v0
    v_bfe_u32 v12, v0, 4, 2
    v_and_b32 v13, 15, v0
    s_cmp_lg_u32 {sW}, 4
    s_cbranch_scc1 L_service
    """)

    c_("wave 4: x[b][80c + 20g ..+20) per lane (b = lane bit 3, g = lane >> 4); wq rows 80c + 20g + t")
    XR, SEL, WQ = 20, 32, 48
    srd_tail(SQ, SX)
    a(f"""
    s_mul_i32 {sA}, {sCc}, {80 * 8192}
    s_lshl_b32 {sT0}, {sH}, 8
    s_add_u32 {sA}, {sA}, {sT0}
    s_mul_i32 {sA2}, {sCc}, 160
    v_mul_u32_u24 v2, {20 * 8192}, v12
    v_lshl_add_u32 v2, v13, 4, v2
    v_lshrrev_b32 v14, 3, v13
    v_mul_u32_u24 v14, 1280, v14
    v_mad_u32_u24 v3, v12, 40, v14
    s_waitcnt lgkmcnt(0)
    """)
    a(f"buffer_load_dwordx4 {vr(XR)}, v3, {srd(SX)}, {sA2} offen", "x0")
    a(f"buffer_load_dwordx4 {vr(XR + 4)}, v3, {srd(SX)}, {sA2} offen offset:16", "x1")
    a(f"buffer_load_dwordx2 {vr(XR + 8, 2)}, v3, {srd(SX)}, {sA2} offen offset:32", "x2")
    for t in range(20):
        if t:
            a(f"s_addk_i32 {sA}, 0x2000")
        a(f"buffer_load_dwordx4 {vr(WQ + 4 * t)}, v2, {srd(SQ)}, {sA} offen nt", ("q", t))
    a("s_branch L_lead")
    lead_vm, a.vm = a.vm, []

    a.label("L_stream")
    vKo, vVo = "v2", "v3"
    vM = ["v4", "v5", "v6", "v7"]
    vMx, vB0, vT0, vT1 = "v8", "v9", "v10", "v11"
    ACC, BT, BQ, SS, SLOT0 = 12, [16, 20], 24, 40, 56
    vS = ["v%d" % (SS + i) for i in range(16)]
    vFa, vFl, vPr = "v252", "v253", "v254"
    free_slots = list(range(49))
    slot_of = {}
    sreg = lambda tag: SLOT0 + 4 * slot_of[tag]
    assert N1 <= 48

    c_("byte offset bits 8..19 inside the 1 MiB window: " + P["pat"])
    c_("(n: load index, w: wave, s: split, r: key inside the load, b / h: batch and head bits)")
    WGBIT = {"s": 5, "b": 7, "h": 0}
    wg_moves = [(7, 27)] + [(WGBIT[p[0]] + int(p[1:]), 8 + i) for i, t in enumerate(pat) for p in t.split("^") if p[0] in WGBIT]
    w_moves = [(int(p[1:]), 8 + i) for i, t in enumerate(pat) for p in t.split("^") if p[0] == "w"]
    a(f"s_lshl_b32 {sKo}, {sH}, 22")
    a(f"s_add_u32 {sKo}, {sKo}, 0x300000")
    for src, moves, allbits in (("s2", wg_moves, 0xff), (sW, w_moves, 3)):
        for g in pack_moves(moves):
            m = sum({1 << s for s, _ in g})
            x = src
            if m != allbits:
                a(f"s_and_b32 {sT0}, {src}, 0x{m:x}")
                x = sT0
            a(f"s_mul_i32 {sT0}, {x}, 0x{sum({1 << (d - s) for s, d in g}):x}")
            a(f"s_and_b32 {sT0}, {sT0}, 0x{sum(1 << d for _, d in g):x}")
            a(f"s_xor_b32 {sKo}, {sKo}, {sT0}")
    srd_tail(SK)
    c_("K lanes: key (lane >> 2) & 3, 16-byte chunk 4 * (lane >> 4) + (lane & 3)")
    a(f"""
    v_and_b32 v14, 3, v0
    v_and_b32 v15, 48, v0
    v_and_b32 v16, 12, v0
    v_lshlrev_b32 v14, 4, v14
    v_lshl_or_b32 {vT0}, v15, 2, v14
    v_lshl_or_b32 {vKo}, v16, {RSH - 2}, {vT0}
    s_waitcnt lgkmcnt(0)
    """)

    seq = [("k", n) for n in range(64)] + [("v", n) for n in range(64)] + [("o", n) for n in range(4)]
    WOA = BQ
    pos, curhi, armed = [0], [0], [False]
    immmask = sum(1 << (8 + i) for i in range(4) if all(p[0] == "n" for p in pat[i].split("^")))
    CLAST = 128 - P["cend"]

    def depth(i):
        return D + max(0, i - (len(seq) - P["nend"]) + 1)

    def depth_hi(i):
        return max(depth(i), DHI + (i - 127 if P["hiend"] and i > 127 else 0)) if i > P["cfrom"] else depth(i)

    def issue_next(throttle=True):
        i = pos[0]
        tag = seq[i]
        kind, n = tag
        if kind == "o":
            if n == 0 and P["wbar"]:
                a("s_barrier")
            a(f"s_add_u32 m0, {sA}, {n * 4096}")
            if n:
                a(f"s_add_u32 {sA2}, {sA2}, {32 * 1280}")
            text = f"buffer_load_dwordx4 v{WOA}, {srd(SO)}, {sA2} offen {P['wopol']} lds"
        else:
            slot_of[tag] = free_slots.pop(0)
            vo, sd = (vKo, SK) if kind == "k" else (vVo, SV)
            cn = scatter(pat, "n", n)
            imm, hi = cn & immmask, cn & ~immmask
            so = sKo
            if hi:
                so = sOff
                if hi != curhi[0]:
                    a(f"s_xor_b32 {sOff}, {sKo}, 0x{hi:x}")
                    curhi[0] = hi
            text = f"buffer_load_dwordx4 {vr(sreg(tag))}, {vo}, {srd(sd)}, {so} offen offset:{imm} nt"
        if throttle:
            lo, hi_ = depth(i), depth_hi(i)
            if lo < hi_ and len(a.vm) >= lo:
                a(f"s_cbranch_vccnz L_b{i}")
                a(f"s_waitcnt vmcnt({lo - 1})")
                a.label(f"L_b{i}")
            if i >= hi_:
                a.wait_vm(seq[i - hi_])
        a(text, tag)
        pos[0] += 1
        stamp("i%d" % i) if keep and "i%d" % i in keep else None
        if armed[0]:
            if P["cfrom"] <= i < len(seq) - 2 and i < CLAST + 8:
                if (i - P["cfrom"]) % 2:
                    a(f"s_waitcnt lgkmcnt(0)\nv_cmp_eq_u32 vcc, 1, {vFl}")
                elif i + 1 < len(seq) - 2:
                    a(f"ds_read_b32 {vFl}, {vFa} offset:{LFL}")
            if i <= CLAST + 1:
                a(f"v_mov_b32 {vPr}, {i}\nds_write_b32 {vFa}, {vPr} offset:{LPR}")

    landed = lambda tag: tag in seq[:pos[0]] and tag not in a.vm

    for _ in range(D):
        issue_next()
    zero_stamps()
    srd_tail(SV, SO, SWS, SOUT)
    load_epoch()
    c_("V lanes: key lane >> 4, chunk lane & 15; v4-v7 select element lane & 7 of eight packed bf16")
    a(f"""
    v_and_b32 {vL}, 63, v0
    v_and_b32 v13, 15, v0
    v_lshlrev_b32 {vVo}, {RSH - 4}, v15
    v_lshl_add_u32 {vVo}, v13, 4, {vVo}
    v_and_b32 v14, 1, {vL}
    v_lshlrev_b32 v14, 4, v14
    v_mov_b32 v15, 0xffff
    v_lshlrev_b32 v14, v14, v15
    v_bfe_u32 v15, {vL}, 1, 2
    """)
    for r in range(4):
        a(f"v_cmp_eq_u32 vcc, {r}, v15")
        a(f"v_mov_b32 v{BQ + 4 * r}, 0\nv_mov_b32 v{BQ + 4 * r + 1}, 0")
        a(f"v_cndmask_b32 {vM[r]}, 0, v14, vcc")
        a(f"v_mov_b32 v{BQ + 4 * r + 2}, 0\nv_mov_b32 v{BQ + 4 * r + 3}, 0")
    a(f"""
    s_mov_b32 {sC}, {f32(128 ** -0.5 * math.log2(math.e))}
    v_lshlrev_b32 v13, 5, v13
    v_and_b32 v14, 16, {vL}
    s_lshl_b32 {sT0}, {sW}, 9
    v_add3_u32 {vB0}, v13, v14, {sT0}
    s_lshl_b32 {sT0}, {sW}, 2
    v_mov_b32 {vFa}, {sT0}
    ds_write_b32 {vFa}, v{BQ} offset:{LFL}
    s_mov_b64 vcc, 0
    """)
    c_(f"{D} loads in flight per wave, {DHI} while vcc (set from wave 7's LDS flag) says the wave is behind")
    armed[0] = True
    while pos[0] < N1:
        issue_next()
        if pos[0] == D + 1:
            stamp("first")
    stamp("preq")
    c_("q is in LDS; operand n holds q in the four columns 4n..4n+3 and zero elsewhere")
    a("s_barrier")
    for n in range(4):
        m = 0x000F000F << (4 * n)
        a(f"""
        s_mov_b32 exec_lo, 0x{m:x}
        s_mov_b32 exec_hi, 0x{m:x}
        ds_read_b128 {vr(BQ + 4 * n)}, {vT0} offset:{LQ}
        """)
    a("s_mov_b64 exec, -1")
    issue_next()
    a("s_waitcnt lgkmcnt(0)")

    def score_group(G):
        acc = ACC if G % 2 == 0 else BT[0]
        for n in range(4):
            tag = ("k", 4 * G + n)
            a(f"v_mfma_f32_16x16x32_bf16 {vr(acc)}, {vr(sreg(tag))}, {vr(BQ + 4 * n)}, {vr(acc) if n else 0}")
            free_slots.append(slot_of[tag])

    def score_finish(G):
        acc = ACC if G % 2 == 0 else BT[0]
        a(f"v_mov_b32_dpp {vS[G]}, v{acc} quad_perm:[0,0,0,0] {FULL}")
        for r in range(1, 4):
            a(f"v_add_f32_dpp {vS[G]}, v{acc + r}, {vS[G]} quad_perm:[{r},{r},{r},{r}] {FULL}")
        if G == 1:
            a(f"v_max_f32 {vMx}, {vS[0]}, {vS[1]}")
        elif G > 1:
            a(f"v_max_f32 {vMx}, {vMx}, {vS[G]}")

    c_("scores: v40+G, lane (row a, quad n) = key a of load 4G + n")
    G = 0
    while G < 16:
        todo = [g for g in (G, G + 1) if g < 16 and landed(("k", 4 * g + 3))]
        for g in todo:
            score_group(g)
        for g in todo:
            score_finish(g)
        G += len(todo)
        if G < 16:
            issue_next()
    stamp("k_done")

    def allreduce_rows(op, reg, tmp):
        a(f"{op}_dpp {reg}, {reg}, {reg} row_ror:4 {FULL}")
        a(f"{op}_dpp {reg}, {reg}, {reg} row_ror:8 {FULL}")
        for sw in ("v_permlane16_swap_b32", "v_permlane32_swap_b32"):
            a(f"v_mov_b32 {tmp}, {reg}\n{sw} {reg}, {tmp}\n{op} {reg}, {reg}, {tmp}")

    c_("p = exp2(c * score - c * max) with this wave's max; (max, sum) go to wave 4 through LDS")
    issue_next(throttle=P["extra"] < 1)
    allreduce_rows("v_max_f32", vMx, vT0)
    a(f"v_mul_f32 v12, {sC}, {vMx}")
    for g in range(16):
        a(f"v_fma_f32 {vS[g]}, {vS[g]}, {sC}, -v12")
    for g in range(16):
        a(f"v_exp_f32 {vS[g]}, {vS[g]}")
    issue_next(throttle=P["extra"] < 2)
    a(f"v_add_f32 v13, {vS[0]}, {vS[1]}\nv_add_f32 v14, {vS[2]}, {vS[3]}")
    for g in range(4, 16, 2):
        a(f"v_add_f32 v13, v13, {vS[g]}\nv_add_f32 v14, v14, {vS[g + 1]}")
    a("v_add_f32 v13, v13, v14")
    allreduce_rows("v_add_f32", "v13", "v14")
    a(f"""
    v_lshlrev_b32 v14, 1, {vFa}
    v_min_u32 v12, -2, v12
    v_min_u32 v13, -2, v13
    s_mov_b64 exec, 1
    ds_write_b64 v14, v[12:13] offset:{LML}
    s_mov_b64 exec, -1
    """)

    vTr, vAo, vYo, vOut, vOne = "v30", "v31", "v32", "v33", "v34"

    def wo_setup():
        c_("wo staging: load n covers rows 32n + 8w + (lane >> 3); the 32-byte column groups of a row are")
        c_("exchanged by row bits 1 and 4 so that the transposed reads spread over the LDS banks")
        a(f"""
        s_lshl_b32 {sA}, {sW}, 10
        s_addk_i32 {sA}, 0x{LWO:x}
        s_lshl_b32 {sA2}, {sH}, 4
        s_add_u32 {sA2}, {sA2}, {sW}
        s_mul_i32 {sA2}, {sA2}, {8 * 1280}
        s_lshl_b32 {sT0}, {sCc}, 7
        s_add_u32 {sA2}, {sA2}, {sT0}
        s_and_b32 {sT0}, {sW}, 2
        s_lshl_b32 {sT0}, {sT0}, 1
        v_lshrrev_b32 {vT0}, 3, {vL}
        v_and_b32 {vT1}, 2, {vT0}
        v_xor_b32 {vT1}, {vL}, {vT1}
        v_xor_b32 {vT1}, {sT0}, {vT1}
        v_and_b32 {vT1}, 7, {vT1}
        v_mul_u32_u24 {vT0}, 1280, {vT0}
        v_lshl_add_u32 v{WOA}, {vT1}, 4, {vT0}
        v_lshrrev_b32 v10, 4, {vL}
        v_bfe_u32 v11, {vL}, 2, 2
        v_lshl_add_u32 {vTr}, v10, 4, v11
        v_lshlrev_b32 {vTr}, 7, {vTr}
        v_bfe_u32 v11, {vL}, 3, 2
        v_xor_b32 v11, {sW}, v11
        v_lshl_add_u32 {vTr}, v11, 5, {vTr}
        v_and_b32 v11, 3, {vL}
        v_lshl_add_u32 {vTr}, v11, 3, {vTr}
        """)

    def tile_setup():
        c_("addresses of the output tile: o image, accumulators, out")
        a(f"""
        v_lshrrev_b32 v10, 4, {vL}
        v_and_b32 v11, 15, {vL}
        v_lshlrev_b32 {vYo}, 8, v10
        v_lshl_add_u32 {vYo}, v11, 2, {vYo}
        v_and_b32 {vOut}, 1, v10
        v_mul_u32_u24 {vOut}, 1280, {vOut}
        v_lshl_add_u32 {vOut}, v11, 1, {vOut}
        v_lshlrev_b32 {vAo}, 4, {vL}
        v_mov_b32 {vOne}, 1.0
        s_lshl_b32 {sOut}, {sCt}, 5
        s_lshl_b32 {sY}, {sCt}, 10
        s_add_u32 {sY}, {sY}, 0x{WS_ACC:x}
        s_lshl_b32 {sOin}, {sH}, 12
        s_mov_b32 {s31f}, {f32(31.0)}
        s_mov_b32 s50, 0x00ff00ff
        s_mov_b32 s51, 0xff00ff00
        s_mov_b32 s52, 0x01ff01ff
        s_mov_b32 s53, 0xff01ff01
        """)

    c_("o += p V: the A operand carries p[key] at element lane & 7, so D keeps the 128 dims apart")
    for n in range(64):
        tag = ("v", n)
        bt = BT[n & 1]
        if n % 4 == 0:
            a(f"v_cvt_pk_bf16_f32 {vS[n >> 2]}, {vS[n >> 2]}, {vS[n >> 2]}")
        if n == 5:
            wo_setup()
        if n == 7:
            a(f"s_lshl_b32 {sCt}, {sCc}, 2\ns_add_u32 {sCt}, {sCt}, {sW}")
            tile_setup()
        for r in range(4):
            a(f"v_and_b32_dpp v{bt + r}, {vS[n >> 2]}, {vM[r]} row_newbcast:{4 * (n & 3)} {FULL}")
        while not landed(tag):
            if pos[0] < len(seq) and pos[0] - seq.index(tag) <= depth_hi(pos[0]):
                issue_next()
            else:
                a.wait_vm(tag)
        if n in (32, 63):
            stamp("v%d" % n)
        a(f"v_mfma_f32_16x16x32_bf16 {vr(ACC)}, {vr(bt)}, {vr(sreg(tag))}, {vr(ACC) if n else 0}")
        free_slots.append(slot_of[tag])
    assert pos[0] == len(seq)
    a(f"""
    s_mov_b32 exec_hi, 0
    ds_write_b128 {vB0}, {vr(ACC)} offset:{LOP}
    s_mov_b32 exec_hi, -1
    s_waitcnt lgkmcnt(0)
    s_barrier
    """)
    a.vm = []

    AW, AO = 40, 56

    def o_loads():
        mem(f"buffer_load_dwordx4 {vr(AO)}, {vAo}, {srd(SWS)}, {sOin} offen sc1")
        mem(f"buffer_load_dwordx4 {vr(AO + 4)}, {vAo}, {srd(SWS)}, {sOin} offen offset:1024 sc1")

    def tr_reads(base, pitch):
        for k in range(2):
            for hh in range(2):
                for half in range(2):
                    a(f"ds_read_b64_tr_b16 {vr(AW + 8 * hh + 4 * k + 2 * half, 2)}, {vTr} "
                      f"offset:{base + (64 * k + 8 * hh + 4 * half) * pitch}")

    c_("behind this barrier wave 4 has issued this workgroup's o; behind the next one wo is in LDS")
    a("s_barrier")
    stamp("B3b")
    o_loads()
    a("s_waitcnt vmcnt(2)")
    stamp("wo_in")
    a("s_barrier")
    tr_reads(LWO, 128)
    a.label("L_tile")
    a(f"""
    s_waitcnt vmcnt(0)
    v_max3_u32 v12, v{AO}, v{AO + 1}, v{AO + 2}
    v_max3_u32 v13, v{AO + 3}, v{AO + 4}, v{AO + 5}
    v_max3_u32 v12, v12, v{AO + 6}, v{AO + 7}
    v_max_u32 v12, v12, v13
    v_cmp_eq_u32 vcc, -1, v12
    s_cbranch_vccz L_mul
    """)
    a.label("L_pollo")
    c_("lanes that still hold the all-ones marker load again")
    a("s_mov_b64 exec, vcc")
    o_loads()
    a("s_mov_b64 exec, -1")
    spin_guard("L_fin")
    a.label("L_mul")
    c_("A rows: 8 * (s >> 1) + 4b + 2 * (s & 1) + half; v16-19 is valid on even rows, v20-23 on odd rows")
    a(f"""
    s_waitcnt vmcnt(1) lgkmcnt(0)
    v_mfma_f32_16x16x32_bf16 v[16:19], {vr(AO)}, {vr(AW)}, 0
    v_mfma_f32_16x16x32_bf16 v[20:23], {vr(AO)}, {vr(AW + 8)}, 0
    v_max3_u32 v12, v{AO}, v{AO + 1}, v{AO + 2}
    s_waitcnt vmcnt(0)
    v_mfma_f32_16x16x32_bf16 v[16:19], {vr(AO + 4)}, {vr(AW + 4)}, v[16:19]
    v_max3_u32 v13, v{AO + 3}, v{AO + 4}, v{AO + 5}
    v_max3_u32 v12, v12, v{AO + 6}, v{AO + 7}
    v_mfma_f32_16x16x32_bf16 v[20:23], {vr(AO + 4)}, {vr(AW + 12)}, v[20:23]
    v_max_u32 v12, v12, v13
    v_cmp_eq_u32 vcc, -1, v12
    s_cbranch_vccnz L_pollo
    """)
    stamp("polled2")
    a(f"""
    v_add_f32 v16, v16, v18
    v_add_f32 v17, v21, v23
    v_add_f32 v18, v16, v17
    v_add_f32 v16, v16, v17
    v_permlane32_swap_b32 v16, v18
    s_mov_b64 exec, {sMd}
    v_add_f32 {vOne}, v16, v18
    s_mov_b64 exec, {sMa}
    """)
    c_("each 16-lane row adds 8 sums and a 1.0 to one segment; the 32nd arrival owns the totals")
    mem(f"buffer_atomic_add_f32 {vOne}, {vYo}, {srd(SWS)}, {sY} offen sc0")
    stamp("y_pub")
    a(f"""
    v_add_f32 v16, v16, v18
    s_waitcnt vmcnt(0)
    v_cmp_eq_f32 vcc, {s31f}, {vOne}
    v_add_f32 v16, v16, {vOne}
    s_and_b32 {sT0}, vcc_lo, 0x01000100
    s_and_b32 {sT1}, vcc_hi, 0x00010001
    v_cvt_pk_bf16_f32 v16, v16, v16
    s_lshr_b32 {sT2}, {sT0}, 8
    s_sub_u32 exec_lo, {sT0}, {sT2}
    s_mul_i32 exec_hi, {sT1}, 0xff00
    """)
    stamp("polled3")
    a("s_cbranch_execz L_fin")
    mem(f"buffer_store_short v16, {vOut}, {srd(SOUT)}, {sOut} offen {P['outpol']}".rstrip())
    c_("the owner of the first segment advances the epoch: every wave has read it by now")
    a(f"""
    s_cmp_lg_u32 {sOut}, 0
    s_cbranch_scc1 L_fin
    s_and_b64 exec, exec, 1
    s_cbranch_scc0 L_fin
    s_add_u32 {sE}, {sE}, 1
    s_mov_b32 {sT0}, 0x{WS_E:x}
    """)
    if P["eb"] == 1:
        a(f"v_mov_b32 v12, {sE}")
        mem(f"buffer_store_dword v12, off, {srd(SWS)}, {sT0}")
    elif P["eb"] > 1:
        a(f"s_mov_b32 exec_lo, -1\nv_mov_b32 v12, {sE}\nv_lshlrev_b32 v13, 2, {vL}")
        mem(f"buffer_store_dword v12, v13, {srd(SWS)}, {sT0} offen" + (" sc1" if P["eb"] == 3 else ""))
    a.label("L_fin")
    a(END)

    a.label("L_service")
    zero_stamps()
    srd_tail(SWS, SOUT)
    a(f"""
    s_waitcnt lgkmcnt(0)
    s_cmp_eq_u32 {sW}, 6
    s_cbranch_scc1 L_fin
    """)
    load_epoch()
    a(f"""
    s_cmp_eq_u32 {sW}, 7
    s_cbranch_scc1 L_ctrl
    s_add_u32 {sCt}, {sCc}, 32
    """)
    tile_setup()
    a(f"""
    s_lshl_b32 {sA}, {sCc}, 8
    s_add_u32 {sA}, {sA}, 0x{WS_F:x}
    s_waitcnt lgkmcnt(0)
    s_add_u32 {sA3}, {sE}, 1
    s_cmp_lg_u32 {sH}, {sCc}
    s_cbranch_scc1 L_noclear
    """)
    stamp("clear")
    c_("the workgroup with h == c zeroes the 20 segments of column block c, then announces it")
    a(f"""
    v_lshrrev_b32 v2, 3, {vL}
    v_lshlrev_b32 v2, 8, v2
    v_and_b32 v3, 7, {vL}
    v_lshl_add_u32 v2, v3, 4, v2
    v_mov_b32 v4, 0
    v_mov_b32 v5, 0
    v_mov_b32 v6, 0
    v_mov_b32 v7, 0
    s_lshl_b32 {sA2}, {sCc}, 12
    s_add_u32 {sA2}, {sA2}, 0x{WS_ACC:x}
    """)
    mem(f"buffer_store_dwordx4 v[4:7], v2, {srd(SWS)}, {sA2} offen sc1")
    mem(f"buffer_store_dwordx4 v[4:7], v2, {srd(SWS)}, {sA2} offen offset:2048 sc1")
    a("s_mov_b32 exec_hi, 0")
    mem(f"buffer_store_dwordx4 v[4:7], v2, {srd(SWS)}, {sY} offen sc1")
    if P["preout"]:
        a(f"s_lshl_b32 {sA2}, {sCc}, 9")
        if P["preout"] == 1:
            mem(f"buffer_store_dwordx4 v[4:7], {vAo}, {srd(SOUT)}, {sA2} offen sc1")
        else:
            mem(f"buffer_load_dwordx4 v[16:19], {vAo}, {srd(SOUT)}, {sA2} offen")
    a(f"""
    v_lshlrev_b32 v3, 2, {vL}
    v_mov_b32 v8, {sA3}
    s_waitcnt vmcnt(0)
    """)
    mem(f"buffer_store_dword v8, v3, {srd(SWS)}, {sA} offen sc1")
    a("s_mov_b32 exec_hi, -1")
    a.label("L_noclear")
    LWX = LWO + 16384

    def x_loads():
        c_("this wave's wo tile: load n covers rows 32n + (lane >> 1), 32 bytes each")
        srd_tail(SO)
        a(f"""
        s_mul_i32 {sA2}, {sH}, {128 * 1280}
        s_add_u32 {sA2}, {sA2}, {sOut}
        v_lshrrev_b32 v2, 1, {vL}
        v_mul_u32_u24 v2, 1280, v2
        v_and_b32 v3, 1, {vL}
        v_lshl_add_u32 v2, v3, 4, v2
        v_and_b32 v3, 15, {vL}
        v_lshlrev_b32 {vTr}, 9, v12
        v_lshl_add_u32 {vTr}, v3, 3, {vTr}
        """)
        for n in range(4):
            a(f"s_mov_b32 m0, {LWX + 1024 * n}")
            if n:
                a(f"s_add_u32 {sA2}, {sA2}, {32 * 1280}")
            mem(f"buffer_load_dwordx4 v2, {srd(SO)}, {sA2} offen lds")

    if P["xwhen"] == 0:
        x_loads()
    a("s_barrier\ns_mov_b64 exec, 1")
    a.label("L_flag")
    mem(f"buffer_load_dword v8, off, {srd(SWS)}, {sA} sc1")
    spin_guard("L_flagged")
    a(f"""
    s_waitcnt vmcnt(0)
    v_cmp_ne_u32 vcc, {sA3}, v8
    s_cbranch_vccnz L_flag
    """)
    a.label("L_flagged")
    WB = "s_barrier\n" if P["wbar"] else ""
    a("s_mov_b64 exec, -1")
    if P["xwhen"] == 1:
        x_loads()
    a("s_waitcnt vmcnt(0)")
    tr_reads(LWX, 32)
    a(f"{WB}s_barrier\ns_barrier")
    o_loads()
    a("s_barrier\ns_branch L_tile")

    a.label("L_ctrl")
    c_("one line per wg & 7 holds the positions of 32 workgroups; entries of other launches are ignored")
    a(f"""
    s_and_b32 {sA}, s2, 7
    s_lshl_b32 {sA}, {sA}, 8
    s_add_u32 {sA}, {sA}, 0x{WS_B:x}
    s_lshr_b32 {sA2}, s2, 3
    s_lshl_b32 {sA2}, {sA2}, 2
    s_add_u32 {sA2}, {sA2}, {sA}
    v_lshlrev_b32 v10, 2, {vL}
    v_mov_b32 v9, 0
    v_and_b32 v8, 12, v10
    ds_write_b32 v8, v9 offset:{LPR}
    s_mov_b32 {sA3}, {N1 - P['cbar']}
    s_mov_b32 exec_hi, 0
    s_mov_b32 {sFF}, 0xffff
    s_mov_b32 {sTq}, {P['theta']}
    s_waitcnt lgkmcnt(0)
    s_add_u32 {sT16}, {sE}, 1
    s_and_b32 {sT16}, {sT16}, {sFF}
    """)
    a.label("L_ctl")
    a(f"ds_read_b32 v11, v9 offset:{LPR}")
    spin_guard("L_fin")
    a(f"""
    s_waitcnt lgkmcnt(0)
    v_readfirstlane_b32 {sT0}, v11
    v_lshl_or_b32 v12, v11, 16, {sT16}
    s_cmp_ge_u32 {sT0}, {sA3}
    s_cbranch_scc1 L_ctlev
    s_mov_b32 exec_lo, 1
    """)
    mem(f"buffer_store_dword v12, off, {srd(SWS)}, {sA2}")
    a("s_mov_b32 exec_lo, -1")
    mem(f"buffer_load_dword v13, v10, {srd(SWS)}, {sA} offen sc1")
    a(f"""
    s_waitcnt vmcnt(0)
    ds_read_b32 v15, v8 offset:{LPR}
    v_and_b32 v14, {sFF}, v13
    v_cmp_eq_u32 vcc, {sT16}, v14
    v_lshrrev_b32 v13, 16, v13
    v_cndmask_b32 v13, v11, v13, vcc
    v_add_u32_dpp v13, v13, v13 quad_perm:[1,0,3,2] {FULL}
    v_add_u32_dpp v13, v13, v13 quad_perm:[2,3,0,1] {FULL}
    v_add_u32_dpp v13, v13, v13 row_ror:4 {FULL}
    v_add_u32_dpp v13, v13, v13 row_ror:8 {FULL}
    v_readlane_b32 {sT1}, v13, 0
    v_readlane_b32 {sT2}, v13, 16
    s_add_u32 {sT1}, {sT1}, {sT2}
    s_waitcnt lgkmcnt(0)
    v_lshl_add_u32 v15, v15, 5, {sTq}
    v_cmp_gt_i32 vcc, {sT1}, v15
    v_cndmask_b32 v14, 0, 1, vcc
    s_mov_b32 exec_lo, 15
    ds_write_b32 v10, v14 offset:{LFL}
    s_mov_b32 exec_lo, -1
    s_branch L_ctl
    """)
    a.label("L_ctlev")
    a(f"""
    s_cmp_eq_u32 {sA3}, {CLAST}
    s_cbranch_scc1 L_ctlend
    s_mov_b32 {sA3}, {CLAST}
    s_barrier
    s_branch L_ctl
    """)
    a.label("L_ctlend")
    a(f"""
    s_or_b32 {sT0}, {sT16}, 0x{128 << 16:x}
    v_mov_b32 v12, {sT0}
    s_mov_b32 exec_lo, 1
    """)
    mem(f"buffer_store_dword v12, off, {srd(SWS)}, {sA2}")
    if P["wb"]:
        nb = {1: 0, 2: 1, 3: 3, 4: 3}[P["wb"]]
        a("s_barrier\n" * nb)
        a(f"s_cmp_ge_u32 s2, {8 if P['wb'] < 4 else 32}\ns_cbranch_scc1 L_nowb")
        mem("buffer_wbl2 sc1")
        a.label("L_nowb")
        a("s_barrier\n" * (3 - nb) + END)
    else:
        a(f"{WB}s_barrier\ns_barrier\ns_barrier\n{END}")

    a.label("L_lead")
    a.vm = lead_vm
    zero_stamps()
    srd_tail(SWS)
    load_epoch()
    sB = sCt
    c_("byte selectors that place x[t] at element lane & 7; slot addresses of q, (max, sum) and o")
    a(f"""
    s_movk_i32 {sFF}, 0xff
    s_lshr_b32 {sB}, {sCc}, 2
    s_lshl_b32 {sT2}, {sH}, 3
    s_add_u32 {sT2}, {sT2}, {sCc}
    s_lshl_b32 {sMl}, {sT2}, 7
    s_add_u32 {sMl}, {sMl}, 0x{WS_ML:x}
    v_lshlrev_b32 v4, 2, {vL}
    v_mov_b32 v16, -1
    s_mov_b64 exec, 0xff
    ds_write_b32 v4, v16 offset:{LML}
    s_mov_b64 exec, -1
    v_bfe_u32 v15, {vL}, 1, 2
    v_and_b32 v14, 1, {vL}
    v_cmp_eq_u32 vcc, 1, v14
    v_mov_b32 v5, 0x0c0c0100
    v_mov_b32 v6, 0x01000c0c
    v_cndmask_b32 v5, v5, v6, vcc
    v_mov_b32 v6, 0x0c0c0302
    v_mov_b32 v7, 0x03020c0c
    v_cndmask_b32 v6, v6, v7, vcc
    v_mov_b32 v7, 0x0c0c0c0c
    s_lshl_b32 {sA3}, {sH}, 12
    s_and_b32 {sT0}, {sCc}, 2
    s_lshl_b32 {sT0}, {sT0}, 6
    s_add_u32 {sA3}, {sA3}, {sT0}
    s_lshl_b32 {sT0}, {sB}, 6
    s_add_u32 {sA3}, {sA3}, {sT0}
    s_and_b32 {sT0}, {sCc}, 1
    s_lshl_b32 {sT0}, {sT0}, 5
    s_add_u32 {sA3}, {sA3}, {sT0}
    v_lshrrev_b32 v4, 3, {vL}
    v_lshlrev_b32 v4, 8, v4
    v_and_b32 v14, 7, {vL}
    v_lshl_add_u32 v4, v14, 2, v4
    """)
    for r in range(4):
        a(f"v_cmp_eq_u32 vcc, {r}, v15")
        a(f"v_cndmask_b32 v{SEL + r}, v7, v5, vcc")
        a(f"v_cndmask_b32 v{SEL + 4 + r}, v7, v6, vcc")
    c_("q tag byte: bit 7 = write-through resend, bits 6:4 = XCC id, bits 3:0 = epoch + 1")
    a(f"""
    s_lshl_b32 {sA}, {sH}, 13
    s_add_u32 {sA}, {sA}, 0x{WS_Q:x}
    s_lshl_b32 {sT0}, {sB}, 12
    s_add_u32 {sA2}, {sA}, {sT0}
    s_lshl_b32 {sT0}, {sCc}, 9
    s_add_u32 {sA}, {sA}, {sT0}
    v_lshrrev_b32 v5, 5, {vL}
    v_lshlrev_b32 v5, 12, v5
    v_and_b32 v6, 31, {vL}
    v_lshl_add_u32 v5, v6, 4, v5
    v_lshlrev_b32 v6, 4, {vL}
    s_waitcnt lgkmcnt(0)
    s_add_u32 {sT16}, {sE}, 1
    s_and_b32 {sT16}, {sT16}, 0xffff
    s_getreg_b32 {sT0}, hwreg(HW_REG_XCC_ID, 0, 3)
    s_lshl_b32 {sT0}, {sT0}, 4
    s_and_b32 {sTq}, {sT16}, 15
    s_or_b32 {sTq}, {sTq}, {sT0}
    v_mov_b32 v7, {sTq}
    """)
    a.wait_vm("x2")
    QA, QB = 8, [40, 44]
    for t in range(20):
        bt = QB[t & 1]
        for r in range(4):
            a(f"v_perm_b32 v{bt + r}, v{XR + (t >> 1)}, v{XR + (t >> 1)}, v{SEL + 4 * (t & 1) + r}")
        a.wait_vm(("q", t))
        a(f"v_mfma_f32_16x16x32_bf16 {vr(QA)}, {vr(bt)}, {vr(WQ + 4 * t)}, {vr(QA) if t else 0}")
    stamp("q_pub")
    for r in range(4):
        a(f"v_bfi_b32 v{QA + r}, {sFF}, v7, v{QA + r}")

    def q_loads():
        for k in range(4):
            mem(f"buffer_load_dwordx4 {vr(48 + 4 * k)}, v6, {srd(SWS)}, {sA2} offen offset:{1024 * k} sc1")

    def q_check(label):
        a("v_or3_b32 v20, v48, v49, v50")
        for k in range(51, 63, 2):
            a(f"v_or3_b32 v20, v20, v{k}, v{k + 1}")
        a(f"""
        v_bitop3_b32 v20, v20, {sFF}, v63 bitop3:0xc8
        v_cmp_ne_u32 vcc, 0, v20
        s_cbranch_vccnz {label}
        """)

    def dual_store(text, name):
        a(f"s_cmp_eq_u32 {sLoc}, 0\ns_cbranch_scc1 L_{name}_g")
        mem(text)
        a(f"s_branch L_{name}_d")
        a.label(f"L_{name}_g")
        mem(text + " sc1")
        a.label(f"L_{name}_d")

    mem(f"buffer_store_dwordx4 {vr(QA)}, v5, {srd(SWS)}, {sA} offen")
    a(f"s_mov_b32 {sLoc}, 1")
    a.label("L_pollq")
    a(f"""
    s_cmp_ge_u32 {sCnt}, {P['qtries']}
    s_cbranch_scc1 L_qglobal
    s_add_u32 {sCnt}, {sCnt}, 1
    """)
    q_loads()
    a("s_waitcnt vmcnt(0)")
    for k in range(16):
        a(f"v_xor_b32 v{48 + k}, {sTq}, v{48 + k}")
    q_check("L_pollq")
    a.label("L_qdone")
    c_("q = bf16(sum of the eight partials) -> LDS; mark this workgroup's o slot empty")
    a("s_waitcnt vmcnt(0)")
    for x, y in ((48, 52), (56, 60), (48, 56)):
        a(f"v_pk_add_f32 {vr(x, 2)}, {vr(x, 2)}, {vr(y, 2)}")
        a(f"v_pk_add_f32 {vr(x + 2, 2)}, {vr(x + 2, 2)}, {vr(y + 2, 2)}")
    a(f"""
    v_permlane32_swap_b32 v48, v50
    v_permlane32_swap_b32 v49, v51
    v_add_f32 v48, v48, v50
    v_add_f32 v49, v49, v51
    v_lshlrev_b32 v20, 4, v13
    v_bfe_u32 v21, {vL}, 4, 1
    v_lshl_add_u32 v20, v21, 3, v20
    v_lshrrev_b32 v21, 5, {vL}
    v_lshl_add_u32 v20, v21, 2, v20
    v_cvt_pk_bf16_f32 v48, v48, v49
    ds_write_b32 v20, v48 offset:{LQ}
    """)
    stamp("oclear")
    dual_store(f"buffer_store_dword v16, v4, {srd(SWS)}, {sA3} offen", "clr")
    a(f"""
    s_waitcnt lgkmcnt(0)
    s_barrier
    v_and_b32 v20, 3, {vL}
    v_lshlrev_b32 v20, 3, v20
    """)
    a.label("L_pollml")
    c_("wait for the four per-wave (max, sum) pairs in LDS")
    a(f"s_sleep 4\nds_read_b64 v[22:23], v20 offset:{LML}")
    spin_guard("L_mldone")
    a(f"""
    s_waitcnt lgkmcnt(0)
    v_max_u32 v24, v22, v23
    v_cmp_eq_u32 vcc, -1, v24
    s_cbranch_vccnz L_pollml
    """)
    a.label("L_mldone")
    c_("publish the workgroup's pair as four tagged 16-bit halves, after the o slot has been emptied")
    a(f"""
    s_waitcnt vmcnt(0) lgkmcnt(0)
    v_max_f32_dpp v24, v22, v22 quad_perm:[1,0,3,2] {FULL}
    v_max_f32_dpp v24, v24, v24 quad_perm:[2,3,0,1] {FULL}
    v_sub_f32 v26, v22, v24
    v_exp_f32 v26, v26
    v_mul_f32 v25, v26, v23
    v_add_f32_dpp v25, v25, v25 quad_perm:[1,0,3,2] {FULL}
    v_add_f32_dpp v25, v25, v25 quad_perm:[2,3,0,1] {FULL}
    s_mov_b32 {sT0}, 0xffff0000
    v_mov_b32 v21, {sT16}
    v_and_or_b32 v36, v24, {sT0}, v21
    v_lshl_or_b32 v37, v24, 16, v21
    v_and_or_b32 v38, v25, {sT0}, v21
    v_lshl_or_b32 v39, v25, 16, v21
    s_lshl_b32 {sT0}, {sB}, 2
    v_xor_b32 v20, {sT0}, {vL}
    v_lshlrev_b32 v20, 7, v20
    s_mov_b64 exec, 0xff
    """)
    stamp("ml_pub")
    dual_store(f"buffer_store_dwordx4 v[36:39], v6, {srd(SWS)}, {sMl} offen", "ml")
    a(f"s_andn2_b32 {sMl}, {sMl}, 0x3ff")
    a.label("L_pollml2")
    c_("lanes 0-3: the four splits of this batch, lanes 4-7: the other batch")
    mem(f"buffer_load_dwordx4 v[40:43], v20, {srd(SWS)}, {sMl} offen sc1")
    spin_guard("L_ml2done")
    a(f"""
    s_waitcnt vmcnt(0)
    v_xor_b32 v40, {sT16}, v40
    v_xor_b32 v41, {sT16}, v41
    v_xor_b32 v42, {sT16}, v42
    v_xor_b32 v43, {sT16}, v43
    v_or3_b32 v24, v40, v41, v42
    v_or_b32 v24, v24, v43
    v_lshlrev_b32 v24, 16, v24
    v_cmp_ne_u32 vcc, 0, v24
    s_cbranch_vccnz L_pollml2
    """)
    a.label("L_ml2done")
    c_("factor of wave w: exp2(max_w - row max) / row sum")
    a(f"""
    s_waitcnt vmcnt(0)
    v_lshrrev_b32 v41, 16, v41
    v_lshrrev_b32 v43, 16, v43
    v_or_b32 v28, v40, v41
    v_or_b32 v29, v42, v43
    v_max_f32_dpp v24, v28, v28 quad_perm:[1,0,3,2] {FULL}
    v_max_f32_dpp v24, v24, v24 quad_perm:[2,3,0,1] {FULL}
    v_sub_f32 v26, v28, v24
    v_sub_f32 v27, v22, v24
    v_exp_f32 v26, v26
    v_exp_f32 v27, v27
    v_mul_f32 v25, v26, v29
    v_add_f32_dpp v25, v25, v25 quad_perm:[1,0,3,2] {FULL}
    v_add_f32_dpp v25, v25, v25 quad_perm:[2,3,0,1] {FULL}
    v_rcp_f32 v25, v25
    v_mul_f32 v27, v27, v25
    """)
    sG = [sKo, sOff, sC, sY]
    for w in range(4):
        a(f"v_readlane_b32 {sG[w]}, v27, {w}")
    a(f"""
    s_mov_b64 exec, -1
    v_lshlrev_b32 v20, 3, {vL}
    {WB}s_barrier
    """)
    stamp("B3")
    c_("combine the four wave partials and publish o as bf16 in the layout of the tile waves' A operand")
    for w in range(4):
        a(f"ds_read_b64 {vr(40 + 2 * w, 2)}, v20 offset:{LOP + 512 * w}")
    a(f"s_cmp_eq_u32 {sLoc}, 0")
    for w in range(4):
        a(f"s_waitcnt lgkmcnt({3 - w})")
        op = "v_fmac_f32" if w else "v_mul_f32"
        a(f"{op} v36, {sG[w]}, v{40 + 2 * w}\n{op} v37, {sG[w]}, v{41 + 2 * w}")
    a("v_cvt_pk_bf16_f32 v36, v36, v37\nv_min_u32 v36, -2, v36\ns_cbranch_scc1 L_o_g")
    for lab, suffix in ((None, (" " + P["opol"]).rstrip()), ("L_o_g", " sc1")):
        if lab:
            a.label(lab)
        mem(f"buffer_store_dword v36, v4, {srd(SWS)}, {sA3} offen{suffix}")
        stamp("o_pub") if P["stamps"] else None
        a(f"s_barrier\ns_barrier\n{END}")

    a.label("L_qglobal")
    c_("not all eight partials arrived with this XCC id: resend write-through, accept resent partials too")
    a(f"s_mov_b32 {sLoc}, 0")
    for r in range(4):
        a(f"v_or_b32 v{QA + r}, 0x80, v{QA + r}")
    mem(f"buffer_store_dwordx4 {vr(QA)}, v5, {srd(SWS)}, {sA} offen sc1")
    a(f"s_movk_i32 {sT0}, 0xf0")
    a.label("L_pollqg")
    q_loads()
    spin_guard("L_qdone")
    a("s_waitcnt vmcnt(0)")
    for k in range(16):
        a(f"""
        v_bfe_i32 v20, v{48 + k}, 7, 1
        v_and_b32 v20, {sT0}, v20
        v_xor_b32 v{48 + k}, {sTq}, v{48 + k}
        v_bfi_b32 v{48 + k}, v20, 0, v{48 + k}
        """)
    q_check("L_pollqg")
    a("s_branch L_qdone")

    if P["stamps"]:
        a.label("L_end")
        a("s_mov_b64 exec, -1\ns_waitcnt vmcnt(0)")
        stamp("drained")
        a(f"s_getreg_b32 {sT1}, hwreg(HW_REG_XCC_ID)\ns_getreg_b32 {sT2}, hwreg(HW_REG_HW_ID)")
        a("s_waitcnt lgkmcnt(0)\nv_mov_b32 v12, 0")
        for k in range(len(names)):
            a("v_writelane_b32 v12, s%d, %d" % (ST0 + 2 * k, k))
        a(f"""
        v_writelane_b32 v12, {sCnt}, 29
        v_writelane_b32 v12, {sT1}, 30
        v_writelane_b32 v12, {sT2}, 31
        s_lshl_b32 {sT0}, s2, 3
        s_add_u32 {sT0}, {sT0}, {sW}
        s_lshl_b32 {sT0}, {sT0}, 7
        s_add_u32 {sT0}, {sT0}, 0x100000
        v_lshlrev_b32 v13, 2, {vL}
        s_mov_b32 exec_hi, 0
        """)
        mem(f"buffer_store_dword v12, v13, {srd(SWS)}, {sT0} offen")
    a.label("L_exit")
    a("s_endpgm")
    gen.nbytes = a.nbytes

    out = HEADER + "; @launch grid=(256,1,1) block=(512,1,1) lds=%d\n" % LDS
    if names:
        out += "; stamps: " + " ".join(names) + "\n"
    out += DOC
    out += f""".amdgcn_target "amdgcn-amd-amdhsa--gfx950"
.text
.globl {NAME}_kernel
; never executed: places the entry at the start of a 4 KiB page of code
.p2align 12
.fill {(4096 - 768) // 4}, 4, 0xbf810000
.p2align 8
.type {NAME}_kernel,@function
{NAME}_kernel:
""" + a.text() + f""".section .rodata,"a"
.p2align 6
.amdhsa_kernel {NAME}_kernel
  .amdhsa_next_free_vgpr 256
  .amdhsa_next_free_sgpr {102 if P['stamps'] or P['jitter'] else 56}
  .amdhsa_accum_offset 256
  .amdhsa_group_segment_fixed_size 0
  .amdhsa_kernarg_size 64
  .amdhsa_user_sgpr_count 2
  .amdhsa_user_sgpr_kernarg_segment_ptr 1
  .amdhsa_system_sgpr_workgroup_id_x 1
  .amdhsa_float_denorm_mode_32 3
.end_amdhsa_kernel
"""
    return out


if __name__ == "__main__":
    kw = {}
    for arg in sys.argv[2:]:
        k, v = arg.split("=", 1)
        kw[k] = int(v) if v.lstrip("-").isdigit() else v
    open(sys.argv[1], "w").write(gen(**kw))
```
